```python
import torch

def _softmax(x, axis=-1):
    return torch.softmax(x, dim=axis)
def _gelu(x):
    return torch.nn.functional.gelu(x, approximate="tanh")
def _silu(x):
    return torch.nn.functional.silu(x)
def _sigmoid(x):
    return torch.sigmoid(x)
def _layernorm(x, axis=-1, eps=1e-5):
    m = x.mean(dim=axis, keepdim=True)
    v = x.var(dim=axis, keepdim=True, unbiased=False)
    return (x - m) / torch.sqrt(v + eps)
def _scatter_add(tgt, idx, src, axis=0):
    return tgt.clone().index_add_(axis, idx, src)
def _segment_sum(src, seg, n):
    out = torch.zeros((n,) + src.shape[1:], dtype=src.dtype)
    return out.index_add_(0, seg, src)
def _pad(x, pw):
    flat = tuple(v for pair in reversed(pw) for v in pair)
    return torch.nn.functional.pad(x, flat)

kernel_name = 'recurrent_scan__gqa_block_cached__glu_gated_swiglu__decode'

def setup_inputs():

    _w = (lambda a: (lambda t: t.to(torch.bfloat16) if t.is_floating_point() else t)(torch.as_tensor(a)))
    def _A_setup():
        B, Sq, D = 4, 1, 448
        Hq, Hkv, Sk, Dh = 16, 8, 4096, 256
        assert Hq % Hkv == 0, (Hq, Hkv)
        return {
            "x": _w((lambda *s: torch.randn(*s, dtype=torch.bfloat16) * 0.05)(B, Sq, D)),
            "k_cache": _w((lambda *s: torch.randn(*s, dtype=torch.bfloat16) * 3.2)(B, Hkv, Sk, Dh)),
            "v_cache": _w((lambda *s: torch.randn(*s, dtype=torch.bfloat16) * 3.2)(B, Hkv, Sk, Dh)),
            "wq": _w((lambda *s: torch.randn(*s, dtype=torch.bfloat16) * 3.2)(D, Hq * Dh) * (D ** -0.5)),
            "wo": _w((lambda *s: torch.randn(*s, dtype=torch.bfloat16) * 3.2)(Hq * Dh, D) * ((Hq * Dh) ** -0.5)),
        }
    _A_in = _A_setup()

    def _B_setup():
        B, S, D, F = 4, 1, 448, 1792
        return {
            "x": _w((lambda *s: torch.randn(*s, dtype=torch.bfloat16) * 0.05)(B, S, D)),
            "w1": _w((lambda *s: torch.randn(*s, dtype=torch.bfloat16) * 0.4)(D, F) * (2.0 / D) ** 0.5),
            "w3": _w((lambda *s: torch.randn(*s, dtype=torch.bfloat16) * 0.4)(D, F) * (2.0 / D) ** 0.5),
            "w2": _w((lambda *s: torch.randn(*s, dtype=torch.bfloat16) * 0.4)(F, D) * (2.0 / F) ** 0.5),
        }
    _B_in = _B_setup()

    return {
        "A_x": _A_in["x"],
        "A_k_cache": _A_in["k_cache"],
        "A_v_cache": _A_in["v_cache"],
        "A_wq": _A_in["wq"],
        "A_wo": _A_in["wo"],
        "B_x": _B_in["x"],
        "B_w1": _B_in["w1"],
        "B_w3": _B_in["w3"],
        "B_w2": _B_in["w2"],
    }

def reference(A_x, A_k_cache, A_v_cache, A_wq, A_wo, B_x, B_w1, B_w3, B_w2):
    def _A_ref(x, k_cache, v_cache, wq, wo):
        B, Sq, D = x.shape
        Hq, Dh = 16, 256
        Hkv = k_cache.shape[1]
        rep = Hq // Hkv
        q = (lambda x, *d: x.permute(*d))((x @ wq).reshape(B, Sq, Hq, Dh), 0, 2, 1, 3)
        k = (lambda x, n, axis: torch.repeat_interleave(x, n, dim=axis))(k_cache, rep, axis=1)
        v = (lambda x, n, axis: torch.repeat_interleave(x, n, dim=axis))(v_cache, rep, axis=1)
        scores = torch.einsum("bhqd,bhkd->bhqk", q, k) * (Dh ** -0.5)
        p = _softmax(scores, axis=-1)
        o = torch.einsum("bhqk,bhkd->bhqd", p, v)
        return (lambda x, *d: x.permute(*d))(o, 0, 2, 1, 3).reshape(B, Sq, Hq * Dh) @ wo

    def _B_ref(x, w1, w3, w2):
        gate = torch.einsum("bsd,df->bsf", x, w1)
        up = torch.einsum("bsd,df->bsf", x, w3)
        h = _silu(gate) * up
        out = torch.einsum("bsf,fd->bsd", h, w2)
        return out

    x = A_x
    xn = _layernorm(x, axis=-1)
    s = _A_ref(xn, A_k_cache, A_v_cache, A_wq, A_wo)
    g = _silu(_B_ref(xn, B_w1, B_w3, B_w2))
    return x + s * g
```

```python
import re

TRANS = ("v_exp_f32", "v_log_f32", "v_rcp_f32", "v_rsq_f32", "v_sqrt_f32", "v_sin_f32", "v_cos_f32")

def regs_of(tok):
    tok = tok.strip()
    neg = tok.lstrip("-")
    m = re.fullmatch(r"abs\((.*)\)", neg)
    if m: neg = m.group(1)
    m = re.fullmatch(r"\|(.*)\|", neg)
    if m: neg = m.group(1)
    m = re.fullmatch(r"([vsa])(\d+)", neg)
    if m: return [(m.group(1), int(m.group(2)))]
    m = re.fullmatch(r"([vsa])\[(\d+):(\d+)\]", neg)
    if m: return [(m.group(1), i) for i in range(int(m.group(2)), int(m.group(3)) + 1)]
    if neg == "vcc": return [("s", "vcc")]
    if neg in ("vcc_lo", "vcc_hi"): return [("s", "vcc")]
    if neg == "exec" or neg in ("exec_lo", "exec_hi"): return [("s", "exec")]
    if neg == "m0": return [("s", "m0")]
    return []

def split_ops(rest):
    out = []; depth = 0; cur = ""
    for ch in rest:
        if ch in "[(": depth += 1
        if ch in "])": depth -= 1
        if ch == "," and depth == 0:
            out.append(cur.strip()); cur = ""
        else: cur += ch
    if cur.strip(): out.append(cur.strip())
    return out

class Ins:
    def __init__(self, text):
        self.text = text
        body = text.split(";")[0].strip()
        self.label = body.endswith(":")
        self.directive = body.startswith(".")
        self.op = "" if (self.label or self.directive or not body) else body.split()[0]
        self.w = []; self.r = []; self.kind = "other"
        if not self.op: return
        rest = body[len(self.op):].strip()
        ops = split_ops(rest)
        toks = []
        mods = ""
        for i, o in enumerate(ops):
            parts = o.split()
            toks.append(parts[0] if parts else "")
            if len(parts) > 1: mods += " " + " ".join(parts[1:])
        self.mods = mods
        op = self.op
        self.dpp = ("_dpp" in op) or ("quad_perm" in rest) or ("row_" in rest)
        if op.startswith("v_mfma"):
            self.kind = "mfma"
            self.D = regs_of(toks[0]); self.A = regs_of(toks[1]); self.B = regs_of(toks[2]); self.C = regs_of(toks[3])
            self.w = self.D; self.r = self.A + self.B + self.C
            self.passes = 8 if "32x32" in op else 4
        elif op.startswith("v_"):
            self.kind = "valu"
            if op.startswith("v_cmp"):
                self.w = regs_of(toks[0]); self.r = sum((regs_of(t) for t in toks[1:]), [])
            elif op.startswith("v_permlane") and "swap" in op:
                self.w = regs_of(toks[0]) + regs_of(toks[1]); self.r = list(self.w)
            elif op.startswith(("v_add_co", "v_sub_co", "v_addc_co", "v_subb_co", "v_div_scale", "v_mad_u64")):
                self.w = regs_of(toks[0]) + regs_of(toks[1]); self.r = sum((regs_of(t) for t in toks[2:]), [])
            elif op == "v_nop":
                pass
            else:
                self.w = regs_of(toks[0]); self.r = sum((regs_of(t) for t in toks[1:]), [])
                if op.startswith(("v_fmac", "v_dot2c", "v_writelane")) or self.dpp: self.r += self.w
                if op.startswith("v_cndmask") and len(toks) == 3: self.r += [("s", "vcc")]
        elif op.startswith(("buffer_", "global_")):
            self.kind = "vmem"
            lds = " lds" in (" " + rest) or "load_lds" in op
            self.lds = lds
            allr = sum((regs_of(t) for t in toks), [])
            if "load" in op and not lds:
                self.w = regs_of(toks[0]); self.r = sum((regs_of(t) for t in toks[1:]), [])
            elif "atomic" in op and "sc0" in rest:
                self.w = regs_of(toks[0]); self.r = allr
            else:
                self.r = allr
            if lds: self.r += [("s", "m0")]
            self.wide_store = ("store" in op) and (op.endswith("x4") or op.endswith("x3"))
            if self.wide_store:
                self.data = regs_of(toks[0]) if op.startswith("buffer") else regs_of(toks[1])
        elif op.startswith("ds_"):
            self.kind = "ds"
            if op.startswith(("ds_read", "ds_bpermute", "ds_permute", "ds_swizzle")):
                self.w = regs_of(toks[0]); self.r = sum((regs_of(t) for t in toks[1:]), [])
            else:
                self.r = sum((regs_of(t) for t in toks), [])
        elif op.startswith("s_"):
            self.kind = "salu"
            if op.startswith(("s_cmp", "s_cbranch", "s_branch", "s_waitcnt", "s_nop", "s_barrier", "s_endpgm", "s_sleep", "s_setprio")):
                self.r = sum((regs_of(t) for t in toks), [])
                if op in ("s_cbranch_vccnz", "s_cbranch_vccz"): self.r += [("s", "vcc")]
            else:
                self.w = regs_of(toks[0]) if toks else []; self.r = sum((regs_of(t) for t in toks[1:]), [])
                if "saveexec" in op: self.w += [("s", "exec")]
    def states(self):
        if self.op == "s_nop":
            return int(self.text.split(";")[0].split()[1], 0) + 1
        return 1 if self.op else 0

def need(p, c):
    n = 0
    pw = set(p.w); cr = set(c.r); cw = set(c.w)
    pv = {x for x in pw if x[0] in "va"}; ps = {x for x in pw if x[0] == "s"}
    if p.kind == "valu":
        if c.kind == "mfma" and pv & cr: n = max(n, 2)
        if c.kind == "valu":
            if c.dpp and pv & cr: n = max(n, 2)
            if c.op.startswith("v_permlane") and pv & cr: n = max(n, 2)
            if p.op.replace("_e32", "").replace("_e64", "") in TRANS and pv & cr: n = max(n, 1)
            if c.op.startswith(("v_readlane", "v_readfirstlane")) and pv & cr: n = max(n, 1)
            if ps & cr: n = max(n, 4 if c.op.startswith(("v_readlane", "v_writelane")) else 2)
            if ("s", "exec") in ps: n = max(n, 5 if c.dpp else (4 if c.op.startswith(("v_readlane", "v_readfirstlane", "v_writelane", "v_permlane")) else 0))
        if c.kind == "vmem" and ps & cr: n = max(n, 5)
        if c.kind == "salu" and ps & cr: n = max(n, 2)
        if c.kind == "mfma" and ("s", "exec") in ps: n = max(n, 4)
    if p.kind == "mfma":
        D = set(p.D)
        big = 8 if p.passes == 4 else 12
        if c.kind == "mfma":
            if D & (set(c.A) | set(c.B)): n = max(n, big)
            if D & set(c.C):
                if not (c.C == p.D and c.passes == p.passes): n = max(n, big - 2)
            if D & set(c.D) and not (D & set(c.C)): n = max(n, big)
        elif c.kind in ("valu", "vmem", "ds"):
            if D & (cr | cw): n = max(n, big)
        if c.kind == "valu" and set(p.C) & cw: n = max(n, 3 if p.passes == 4 else 7)
    if p.kind == "vmem" and getattr(p, "wide_store", False):
        if c.kind in ("valu", "mfma") and set(p.data) & cw: n = max(n, 2)
        if c.kind in ("vmem", "ds") and set(p.data) & cw: n = max(n, 1)
    if p.kind == "salu" and ("s", "m0") in pw and c.kind == "vmem" and getattr(c, "lds", False): n = max(n, 1)
    return n

def pad(lines):
    out = []
    hist = []
    pos = 0
    npad = 0
    for t in lines:
        ins = Ins(t)
        if not ins.op:
            out.append(t); continue
        req = 0
        for p, ppos in hist[-24:]:
            k = need(p, ins)
            if k:
                have = pos - ppos
                req = max(req, k - have)
        while req > 0:
            k = min(req, 16)
            out.append(f"s_nop {k-1}"); pos += k; req -= k; npad += 1
        out.append(t)
        pos += ins.states()
        hist.append((ins, pos))
    return out, npad

class Asm:
    def __init__(self): self.L = []
    def __call__(self, s):
        for line in s.split("\n"):
            line = line.strip()
            if line: self.L.append(line)
    def c(self, s): self.L.append("; " + s)
    def text(self):
        out, n = pad(self.L)
        res = []
        for l in out:
            if l.endswith(":") or l.startswith(".") or l.startswith(";"): res.append(l)
            else: res.append("    " + l)
        return "\n".join(res) + "\n", n
```

```python
import sys
from asmlib import Asm
KNAME = "recurrent_scan__gqa_block_cached__glu_gated_swiglu__decode_kernel"

WS_EPOCH = 0
WS_QG = 0x1000
WS_HG = 0x20000
WS_FG = 0x30000
WS_ML = 0x50000
WS_RDY = 0x60000
WS_M1 = 0x80000
WS_M2 = 0x100000
WS_ST = 0x200000
WS_SIZE = 0x400000
L_WQ = 0
L_W1 = 14336
L_W3 = 21504
L_W2 = 28672
L_XN = 35840
L_Q = 39936
L_NONCE = 40960
L_C = 40976 + 16 - 16 + 0
L_C = 41088
L_H = 41472
L_ACC = 43520
L_PP = 51712
L_TOTAL = 53760
SPIN = 40000
LOG2E = 1.4426950408889634

import struct
def f2u(x): return struct.unpack("<I", struct.pack("<f", x))[0]

HEADER = """; Kernarg layout (96 bytes): 0 A_x, 8 A_k_cache, 16 A_v_cache, 24 A_wq, 32 A_wo, 40 B_x (unused by the reference),
"""

def gen(D0=8, R=44, CU=2, kmod=" nt", vmod=" nt", wmod="", womod="", diag=False, wo_at=0, ffn=True, sl1=2, sl2=1, slq=2, fmod=None, nowo=False, nowq=False, nof13=False, nof2=False):
    A = Asm()
    if fmod is None: fmod = wmod
    nst = [0]
    def stamp(role_off):
        if diag:
            k = nst[0]; nst[0] += 1
            A(f"s_memrealtime s[{82+2*k}:{83+2*k}]")
    def dump_stamps(n):
        if not diag: return
        A("s_waitcnt vmcnt(0) lgkmcnt(0)")
        A("s_mul_i32 s12, s2, 5"); A("s_add_u32 s12, s12, s3"); A("s_lshl_b32 s12, s12, 6")
        A(f"s_add_u32 s12, s12, {WS_ST}")
        A("s_mov_b64 exec, 1")
        A("v_mov_b32 v4, 0")
        for q in range(0, 10, 2):
            for e in range(2):
                k = q + e
                A(f"v_mov_b32 v{6+e}, s{82+2*k}" if k < n else f"v_mov_b32 v{6+e}, 0")
            A(f"buffer_store_dwordx2 v[6:7], v4, s[40:43], s12 offen offset:{q*4}")
            A("s_nop 1")
    def srd(d, p, size):
        A(f"s_mov_b32 s{d}, s{p}"); A(f"s_mov_b32 s{d+1}, s{p+1}")
        A(f"s_mov_b32 s{d+2}, {size}"); A(f"s_mov_b32 s{d+3}, 0x20000")
    lab = [0]
    def poll_begin():
        lab[0] += 1
        A(f"s_mov_b32 s11, {SPIN}")
        A(f"L_poll{lab[0]}:")
        return lab[0]
    def poll_end(n, sleep):
        A(f"s_cbranch_vccz L_done{n}")
        A("s_sub_u32 s11, s11, 1")
        A(f"s_cbranch_scc1 L_done{n}")
        if sleep: A(f"s_sleep {sleep}")
        A(f"s_branch L_poll{n}")
        A(f"L_done{n}:")
    DPP = "row_mask:0xf bank_mask:0xf"
    def bf16r(dst, src):
        A(f"v_cvt_pk_bf16_f32 {dst}, {src}, {src}")
        A(f"v_and_b32 {dst}, 0xffff0000, {dst}")
    def xrow(op, regs, tmps):
        for sw in ("v_permlane16_swap_b32", "v_permlane32_swap_b32"):
            for r, t in zip(regs, tmps): A(f"v_mov_b32 {t}, {r}")
            for r, t in zip(regs, tmps): A(f"{sw} {r}, {t}")
            for r, t in zip(regs, tmps): A(f"{op} {r}, {r}, {t}")

    A(f"; @launch grid=(256,1,1) block=(320,1,1) lds={L_TOTAL}")
    A('.amdgcn_target "amdgcn-amd-amdhsa--gfx950"')
    A(".text"); A(f".globl {KNAME}"); A(".p2align 8"); A(f".type {KNAME},@function"); A(f"{KNAME}:")
    A("s_cmp_ge_u32 s2, 256"); A("s_cbranch_scc1 L_end")
    A("s_load_dwordx16 s[16:31], s[0:1], 0")
    A("s_load_dwordx8 s[32:39], s[0:1], 64")
    stamp(0)
    A("v_lshrrev_b32 v1, 6, v0"); A("v_and_b32 v0, 63, v0")
    A("v_readfirstlane_b32 s3, v1")
    A("s_and_b32 s4, s2, 7")
    A("s_lshr_b32 s5, s2, 3")
    A("s_lshr_b32 s6, s5, 3")
    A("s_and_b32 s7, s5, 7")
    A("s_lshl_b32 s8, s6, 3"); A("s_add_u32 s8, s8, s4")
    A("s_lshl_b32 s9, s4, 3"); A("s_add_u32 s9, s9, s7")
    A("v_lshrrev_b32 v4, 4, v0")
    A("v_and_b32 v5, 15, v0")
    A("s_waitcnt lgkmcnt(0)")
    srd(40, 38, WS_SIZE)
    A("s_cmp_eq_u32 s3, 0"); A("s_cbranch_scc1 L_helper")

    A.c("================ stream waves ================")
    A("s_sub_u32 s13, s3, 1")
    srd(44, 18, 0x4000000); srd(48, 20, 0x4000000)
    A("v_lshlrev_b32 v1, 6, v4"); A("v_bfe_u32 v6, v0, 2, 2"); A("v_lshlrev_b32 v6, 9, v6")
    A("v_and_b32 v7, 3, v0"); A("v_lshlrev_b32 v2, 4, v7"); A("v_add3_u32 v1, v1, v6, v2")
    A("s_lshl_b32 s68, s8, 21"); A("s_lshl_b32 s12, s7, 18"); A("s_add_u32 s68, s68, s12")
    A("s_lshl_b32 s12, s13, 11"); A("s_add_u32 s68, s68, s12")
    A("s_mov_b32 s69, s68")
    RING0 = 80
    free = list(range((256 - RING0) // 4))
    assert R <= len(free)
    items = [("k", i) for i in range(64)]
    vi = [("v", i) for i in range(64)]
    wi = [("w", i) for i in range(16)]
    rest = []
    for i, it in enumerate(vi):
        rest.append(it)
        if i >= wo_at and (i - wo_at) % 2 == 1 and wi: rest.append(wi.pop(0))
    rest += wi
    items += rest
    pos = {it: n for n, it in enumerate(items)}
    reg = {}
    issued = [0]
    def issue():
        it = items[issued[0]]
        q = free.pop(0); reg[it] = RING0 + 4 * q
        r = reg[it]
        t, i = it
        if t == "k":
            if i % 2 == 0 and i > 0: A("s_add_u32 s68, s68, 8192")
            A(f"buffer_load_dwordx4 v[{r}:{r+3}], v1, s[44:47], s68 offen offset:{(i%2)*256}{kmod}")
        elif t == "v":
            if i % 2 == 0 and i > 0: A("s_add_u32 s69, s69, 8192")
            A(f"buffer_load_dwordx4 v[{r}:{r+3}], v2, s[48:51], s69 offen offset:{(i%2)*256}{vmod}")
        else:
            h, tt = i // 8, i % 8
            if i > 0: A(f"s_add_u32 s70, s70, {896 if tt else 896*(256-7)}")
            A(f"buffer_load_dwordx4 v[{r}:{r+3}], v3, s[52:55], s70 offen{womod}")
        issued[0] += 1
    def release(it):
        free.append((reg[it] - RING0) // 4)
    def wait_for(it):
        n = issued[0] - 1 - pos[it]
        assert n >= 0
        A(f"s_waitcnt vmcnt({min(n,63)})")
    for n in range(D0): issue()
    A("v_lshlrev_b32 v2, 9, v4"); A("v_lshlrev_b32 v6, 4, v5"); A("v_add_u32 v2, v2, v6")
    srd(52, 24, 0 if nowo else 4096 * 896)
    A("v_mul_u32_u24 v3, 7168, v4"); A("v_add_u32 v3, v3, v6")
    A("v_mov_b32 v7, 0x40000000"); A("v_cmp_lt_u32 vcc, 13, v5"); A("v_cndmask_b32 v3, v3, v7, vcc")
    A("s_lshl_b32 s70, s4, 9"); A("s_lshl_b32 s12, s7, 5"); A("s_add_u32 s70, s70, s12"); A("s_mul_i32 s70, s70, 896")
    A("s_mul_i32 s12, s13, 224"); A("s_add_u32 s70, s70, s12")
    A("v_and_b32 v6, 1, v0"); A("v_mov_b32 v7, 0xffff"); A("v_mov_b32 v8, 0xffff0000")
    A("v_cmp_eq_u32 vcc, 1, v6"); A("v_cndmask_b32 v7, v7, v8, vcc")
    A("v_bfe_u32 v6, v0, 1, 2")
    for r in range(4):
        A(f"v_cmp_eq_u32 vcc, {r}, v6"); A(f"v_cndmask_b32 v{16+r}, 0, v7, vcc")
    for r in range(8): A(f"v_mov_b32 v{20+r}, 0")
    A("v_bfe_u32 v6, v0, 3, 1"); A("v_lshlrev_b32 v6, 9, v6"); A("v_lshlrev_b32 v7, 6, v4"); A("v_add_u32 v6, v6, v7")
    A("v_and_b32 v7, 3, v0"); A("v_lshlrev_b32 v7, 4, v7"); A("v_add_u32 v6, v6, v7")
    A(f"v_mov_b32 v7, {L_NONCE}")
    A("v_mov_b32 v76, 0xff800000")
    while issued[0] < R:
        A(f"s_waitcnt vmcnt({D0-1})"); issue()
    stamp(0)
    A("s_barrier")
    A(f"ds_read_b128 v[8:11], v6 offset:{L_Q}"); A(f"ds_read_b128 v[12:15], v6 offset:{L_Q+256}")
    A("ds_read_b32 v77, v7")
    A("s_waitcnt lgkmcnt(0)")
    stamp(0)
    SC = 44
    def qk_reduce(u):
        d = 28 + 4 * (u % 2)
        A(f"v_mov_b32_dpp v4, v{d} quad_perm:[0,0,0,0] {DPP}")
        A(f"v_mov_b32_dpp v5, v{d+2} quad_perm:[2,2,2,2] {DPP}")
        A("s_nop 0")
        A(f"v_add_f32_dpp v4, v{d+1}, v4 quad_perm:[1,1,1,1] {DPP}")
        A(f"v_add_f32_dpp v5, v{d+3}, v5 quad_perm:[3,3,3,3] {DPP}")
        A(f"v_add_f32 v{SC+u}, v4, v5")
        if u % 2 == 1: A(f"v_max3_f32 v76, v76, v{SC+u-1}, v{SC+u}")
    def paced_issue():
        if issued[0] < len(items) and free:
            A(f"s_waitcnt vmcnt({D0-1})"); issue(); return True
        return False
    def landed():
        return issued[0] - 1 - D0
    u = 0
    while u < 32:
        k1 = ("k", 2*u+1)
        while pos[k1] > landed() and paced_issue(): pass
        burst = 0
        while u < 32 and burst < CU and (pos[("k", 2*u+1)] <= landed() or burst == 0):
            k0, k1 = ("k", 2*u), ("k", 2*u+1)
            if pos[k1] > landed(): wait_for(k1)
            d = 28 + 4 * (u % 2)
            A(f"v_mfma_f32_16x16x32_bf16 v[{d}:{d+3}], v[{reg[k0]}:{reg[k0]+3}], v[8:11], 0")
            A(f"v_mfma_f32_16x16x32_bf16 v[{d}:{d+3}], v[{reg[k1]}:{reg[k1]+3}], v[12:15], v[{d}:{d+3}]")
            release(k0); release(k1)
            if u > 0: qk_reduce(u - 1)
            u += 1; burst += 1
        if u < 32 and pos[("k", 2*u+1)] <= landed(): paced_issue()
    qk_reduce(31)
    stamp(0)
    A.c("---- softmax over this wave's 128 keys ----")
    xrow("v_max_f32", ["v76"], ["v4"])
    bf16r("v76", "v76")
    A(f"s_mov_b32 s12, {f2u(LOG2E/16)}")
    A("v_mov_b32 v78, 0"); A("v_mov_b32 v79, 0")
    for u in range(0, 32, 2):
        a, b_ = SC + u, SC + u + 1
        A(f"v_cvt_pk_bf16_f32 v4, v{a}, v{b_}")
        A(f"v_lshlrev_b32 v{a}, 16, v4"); A(f"v_and_b32 v{b_}, 0xffff0000, v4")
        A(f"v_sub_f32 v{a}, v{a}, v76"); A(f"v_sub_f32 v{b_}, v{b_}, v76")
        A(f"v_mul_f32 v{a}, s12, v{a}"); A(f"v_mul_f32 v{b_}, s12, v{b_}")
        A(f"v_exp_f32 v{a}, v{a}"); A(f"v_exp_f32 v{b_}, v{b_}")
        A(f"v_add_f32 v78, v78, v{a}"); A(f"v_add_f32 v79, v79, v{b_}")
        A(f"v_cvt_pk_bf16_f32 v{a}, v{a}, v{a}"); A(f"v_cvt_pk_bf16_f32 v{b_}, v{b_}, v{b_}")
        if u % 8 == 6: paced_issue()
    A("v_add_f32 v78, v78, v79")
    xrow("v_add_f32", ["v78"], ["v4"])
    A("v_mov_b32 v79, v77")
    A("v_lshlrev_b32 v4, 1, v0")
    A("s_lshl_b32 s12, s8, 10"); A("s_lshl_b32 s14, s7, 7"); A("s_add_u32 s12, s12, s14")
    A("s_lshl_b32 s14, s13, 5"); A("s_add_u32 s12, s12, s14"); A(f"s_add_u32 s12, s12, {WS_ML}")
    A("s_mov_b64 exec, 0x101")
    A("buffer_store_dwordx4 v[76:79], v4, s[40:43], s12 offen sc1")
    A("s_mov_b64 exec, -1")
    stamp(0)
    A.c("---- P.V ----")
    since = 0
    for u in range(32):
        v0_, v1_ = ("v", 2*u), ("v", 2*u+1)
        a = 36 + 4 * (u % 2)
        for r in range(4): A(f"v_and_b32 v{a+r}, v{16+r}, v{SC+u}")
        if pos[v1_] <= landed():
            since += 1
            if since >= CU: paced_issue(); since = 0
        while pos[v1_] > landed() and paced_issue(): pass
        if pos[v1_] > landed(): wait_for(v1_)
        A(f"v_mfma_f32_16x16x32_bf16 v[20:23], v[{a}:{a+3}], v[{reg[v0_]}:{reg[v0_]+3}], v[20:23]")
        A(f"v_mfma_f32_16x16x32_bf16 v[24:27], v[{a}:{a+3}], v[{reg[v1_]}:{reg[v1_]+3}], v[24:27]")
        release(v0_); release(v1_)
        if u == 28:
            A("v_lshrrev_b32 v4, 5, v0"); A("v_lshlrev_b32 v4, 10, v4")
            A("v_and_b32 v5, 15, v0"); A("v_lshlrev_b32 v6, 5, v5"); A("v_add_u32 v4, v4, v6")
            A("v_bfe_u32 v6, v0, 4, 1"); A("v_lshlrev_b32 v6, 4, v6"); A("v_add_u32 v4, v4, v6")
            A("s_lshl_b32 s12, s13, 11"); A(f"s_add_u32 s12, s12, {L_ACC}"); A("v_add_u32 v4, s12, v4")
            A("v_and_b32 v5, 7, v0"); A("v_lshlrev_b32 v5, 8, v5"); A("v_bfe_u32 v6, v0, 3, 1"); A("v_lshlrev_b32 v6, 7, v6")
            A("v_add_u32 v5, v5, v6"); A("v_lshrrev_b32 v6, 4, v0"); A("v_lshlrev_b32 v6, 5, v6"); A("v_add_u32 v5, v5, v6")
            A("s_lshl_b32 s71, s8, 3"); A("s_add_u32 s71, s71, s7"); A("s_lshl_b32 s71, s71, 11"); A(f"s_add_u32 s71, s71, {WS_M1}")
            A("v_and_b32 v7, 15, v0"); A("v_lshlrev_b32 v7, 11, v7"); A("v_bfe_u32 v6, v0, 4, 1"); A("v_lshlrev_b32 v6, 4, v6"); A("v_add_u32 v7, v7, v6")
            A("s_lshl_b32 s72, s6, 6"); A("s_mul_i32 s12, s13, 14"); A("s_add_u32 s72, s72, s12"); A("s_lshl_b32 s72, s72, 11")
            A("s_lshl_b32 s12, s9, 5"); A("s_add_u32 s72, s72, s12"); A(f"s_add_u32 s72, s72, {WS_M2}")
    assert issued[0] == len(items)
    stamp(0)
    A("ds_write_b128 v4, v[20:23]"); A("ds_write_b128 v4, v[24:27] offset:512")
    A("s_waitcnt lgkmcnt(0)")
    A("s_barrier")
    A.c("---- hand-off 1: gather the 8 splits of my 64 rows (wave 1 polls), project through wo ----")
    A(f"v_lshlrev_b32 v6, 4, v0")
    A("s_cmp_lg_u32 s13, 0"); A("s_cbranch_scc1 L_nopoll1")
    n = poll_begin()
    A("buffer_load_dwordx4 v[44:47], v5, s[40:43], s71 offen sc1")
    A("buffer_load_dwordx4 v[48:51], v5, s[40:43], s71 offen offset:16 sc1")
    A("s_waitcnt vmcnt(0)")
    A("v_max3_u32 v9, v44, v45, v46"); A("v_max3_u32 v8, v47, v48, v49"); A("v_max3_u32 v9, v9, v50, v51"); A("v_max_u32 v9, v9, v8")
    A("v_cmp_eq_u32 vcc, -1, v9")
    poll_end(n, sl1)
    for perm in ("quad_perm:[1,0,3,2]", "quad_perm:[2,3,0,1]", "row_half_mirror"):
        for t in range(8): A(f"v_add_f32_dpp v{44+t}, v{44+t}, v{44+t} {perm} {DPP}")
    for t in range(8): A(f"v_cvt_pk_bf16_f32 v{44+t}, v{44+t}, v{44+t}")
    A(f"ds_write_b128 v6, v[44:47] offset:{L_PP}"); A(f"ds_write_b128 v6, v[48:51] offset:{L_PP+1024}")
    A("s_waitcnt lgkmcnt(0)")
    A("L_nopoll1:")
    A("s_barrier")
    A(f"ds_read_b128 v[44:47], v6 offset:{L_PP}"); A(f"ds_read_b128 v[48:51], v6 offset:{L_PP+1024}")
    A("s_waitcnt vmcnt(0) lgkmcnt(0)")
    stamp(0)
    for t in range(8):
        a = 52 + 4 * (t % 4)
        for r in range(4): A(f"v_and_b32 v{a+r}, v{16+r}, v{44+t}")
        w0, w1 = reg[("w", t)], reg[("w", 8 + t)]
        A(f"v_mfma_f32_16x16x32_bf16 v[28:31], v[{a}:{a+3}], v[{w0}:{w0+3}], " + ("0" if t == 0 else "v[28:31]"))
        A(f"v_mfma_f32_16x16x32_bf16 v[32:35], v[{a}:{a+3}], v[{w1}:{w1+3}], " + ("0" if t == 0 else "v[32:35]"))
    for r in range(4): A(f"v_permlane32_swap_b32 v{32+r}, v{36+r}")
    for r in range(4): A(f"v_add_f32 v{28+r}, v{28+r}, v{36+r}")
    for r in range(4): A(f"v_min_u32 v{28+r}, -2, v{28+r}")
    A("s_mov_b64 exec, 0x3fff3fff")
    A("buffer_store_dwordx4 v[28:31], v7, s[40:43], s72 offen sc1")
    stamp(0)
    dump_stamps(nst[0])
    A("s_endpgm")

    nst[0] = 1
    A.c("================ helper wave ================")
    A("L_helper:")
    A("s_setprio 3")
    A("s_load_dword s10, s[38:39], 0")
    srd(44, 16, 3584); srd(48, 22, 0 if nowq else 448 * 8192)
    A("v_lshlrev_b32 v1, 4, v0")
    A("v_mul_u32_u24 v2, 896, v4"); A("v_lshlrev_b32 v6, 6, v5"); A("v_add_u32 v2, v2, v6")
    A("v_mov_b32 v7, 0x40000000"); A("v_cmp_lt_u32 s[74:75], 13, v5"); A("v_cndmask_b32 v2, v2, v7, s[74:75]")
    X = 16
    for t in range(4): A(f"buffer_load_dwordx4 v[{X+4*t}:{X+4*t+3}], v2, s[44:47], 0 offen offset:{16*t}")
    A("v_lshrrev_b32 v3, 1, v0"); A("v_and_b32 v7, 1, v0"); A("v_lshlrev_b32 v7, 4, v7")
    A("v_lshlrev_b32 v12, 13, v3"); A("v_add_u32 v12, v12, v7")
    A("s_lshl_b32 s73, s4, 9"); A("s_lshl_b32 s12, s5, 4"); A("s_add_u32 s73, s73, s12")
    A("s_lshl_b32 s12, s73, 1")
    for t in range(14):
        A(f"s_mov_b32 m0, {L_WQ + t*1024}")
        if t: A(f"s_add_u32 s12, s12, {32*8192}")
        else: A("s_nop 0")
        A(f"buffer_load_dwordx4 v12, s[48:51], s12 offen{wmod} lds")
    srd(52, 28, 0 if nof13 else 448 * 3584); srd(56, 30, 0 if nof13 else 448 * 3584); srd(60, 32, 0 if nof2 else 1792 * 896)
    A("s_cmp_lt_u32 s5, 28")
    A("s_cselect_b32 s54, s54, 0"); A("s_cselect_b32 s58, s58, 0"); A("s_cselect_b32 s62, s62, 0")
    A("v_mul_u32_u24 v13, 3584, v0")
    A("v_mul_u32_u24 v14, 896, v3"); A("v_add_u32 v14, v14, v7")
    A("s_mul_i32 s76, s4, 28"); A("s_add_u32 s76, s76, s5")
    A("v_lshlrev_b32 v15, 10, v4"); A("v_add_u32 v15, v15, v6")
    A("v_and_b32 v48, 3, v0"); A("v_lshlrev_b32 v49, 10, v48"); A("v_lshlrev_b32 v50, 4, v4"); A("v_add_u32 v49, v49, v50")
    A("v_bfe_u32 v50, v0, 2, 2"); A("v_lshlrev_b32 v51, 3, v4"); A("v_add_u32 v50, v50, v51")
    A("v_lshlrev_b32 v51, 5, v50"); A("v_lshlrev_b32 v52, 3, v48"); A("v_add_u32 v51, v51, v52")
    A("v_lshlrev_b32 v52, 4, v50"); A("v_and_b32 v53, 1, v0"); A("v_lshlrev_b32 v53, 3, v53"); A("v_add_u32 v52, v52, v53")
    A("v_bfe_u32 v53, v0, 1, 1"); A("v_mul_u32_u24 v53, 7168, v53"); A("v_add_u32 v52, v52, v53")
    A("s_waitcnt vmcnt(14) lgkmcnt(0)")
    A("s_add_u32 s10, s10, 1")
    stamp(0)
    A.c("---- LayerNorm (bf16 rounding after every op, as the reference) ----")
    F = 64
    for i in range(16):
        A(f"v_lshlrev_b32 v{F+2*i}, 16, v{X+i}"); A(f"v_and_b32 v{F+2*i+1}, 0xffff0000, v{X+i}")
    A(f"v_pk_add_f32 v[32:33], v[{F}:{F+1}], v[{F+2}:{F+3}]"); A(f"v_pk_add_f32 v[34:35], v[{F+4}:{F+5}], v[{F+6}:{F+7}]")
    for i in range(4, 16, 2):
        A(f"v_pk_add_f32 v[32:33], v[32:33], v[{F+2*i}:{F+2*i+1}]"); A(f"v_pk_add_f32 v[34:35], v[34:35], v[{F+2*i+2}:{F+2*i+3}]")
    A("v_pk_add_f32 v[32:33], v[32:33], v[34:35]"); A("v_add_f32 v32, v32, v33")
    for k in (8, 4, 2, 1): A(f"v_add_f32_dpp v32, v32, v32 row_ror:{k} {DPP}")
    A(f"s_mov_b32 s12, {f2u(1.0/448)}")
    A("v_mul_f32 v32, s12, v32"); A("v_mov_b32 v33, v32")
    A("v_mov_b32 v34, 0"); A("v_mov_b32 v35, 0"); A("v_mov_b32 v36, 0"); A("v_mov_b32 v37, 0")
    for i in range(0, 16, 2):
        A(f"v_pk_add_f32 v[38:39], v[{F+2*i}:{F+2*i+1}], v[32:33] neg_lo:[0,1] neg_hi:[0,1]")
        A(f"v_pk_add_f32 v[40:41], v[{F+2*i+2}:{F+2*i+3}], v[32:33] neg_lo:[0,1] neg_hi:[0,1]")
        A("v_pk_fma_f32 v[34:35], v[38:39], v[38:39], v[34:35]"); A("v_pk_fma_f32 v[36:37], v[40:41], v[40:41], v[36:37]")
    A("v_pk_add_f32 v[34:35], v[34:35], v[36:37]"); A("v_add_f32 v34, v34, v35")
    A("v_cndmask_b32 v34, v34, 0, s[74:75]")
    for k in (8, 4, 2, 1): A(f"v_add_f32_dpp v34, v34, v34 row_ror:{k} {DPP}")
    A("v_mul_f32 v34, s12, v34")
    bf16r("v32", "v32"); A("v_mov_b32 v33, v32")
    bf16r("v34", "v34")
    A(f"v_add_f32 v34, {hex(f2u(1e-5))}, v34"); bf16r("v34", "v34")
    A("v_sqrt_f32 v34, v34"); bf16r("v34", "v34")
    A("v_rcp_f32 v34, v34"); A("v_mov_b32 v35, v34")
    for i in range(16):
        f = F + 2 * i
        A(f"v_pk_add_f32 v[{f}:{f+1}], v[{f}:{f+1}], v[32:33] neg_lo:[0,1] neg_hi:[0,1]")
    for i in range(16):
        f = F + 2 * i
        A(f"v_cvt_pk_bf16_f32 v{X+i}, v{f}, v{f+1}")
    for i in range(16):
        f = F + 2 * i
        A(f"v_lshlrev_b32 v{f}, 16, v{X+i}"); A(f"v_and_b32 v{f+1}, 0xffff0000, v{X+i}")
    for i in range(16):
        f = F + 2 * i
        A(f"v_pk_mul_f32 v[{f}:{f+1}], v[{f}:{f+1}], v[34:35]")
    for i in range(16):
        f = F + 2 * i
        A(f"v_cvt_pk_bf16_f32 v{X+i}, v{f}, v{f+1}")
    for t in range(4): A(f"ds_write_b128 v15, v[{X+4*t}:{X+4*t+3}] offset:{L_XN + 16*t}")
    A("s_waitcnt lgkmcnt(0)")
    AF = 64
    for t in range(14): A(f"ds_read_b128 v[{AF+4*t}:{AF+4*t+3}], v49 offset:{L_XN + 64*t}")
    A("s_waitcnt vmcnt(0)")
    stamp(0)
    BF = 128
    def gemm(nsteps, addr, base, step, second, af, D):
        for t0 in range(0, nsteps, 7):
            ts = range(t0, min(nsteps, t0 + 7))
            A("s_waitcnt lgkmcnt(0)")
            for t in ts:
                A(f"ds_read_b64_tr_b16 v[{BF+4*t}:{BF+4*t+1}], {addr} offset:{base + step*t}")
                A(f"ds_read_b64_tr_b16 v[{BF+4*t+2}:{BF+4*t+3}], {addr} offset:{base + step*t + second}")
        A("s_waitcnt lgkmcnt(0)")
        for t in range(nsteps):
            A(f"v_mfma_f32_16x16x32_bf16 v[{D}:{D+3}], v[{af+4*t}:{af+4*t+3}], v[{BF+4*t}:{BF+4*t+3}], " + ("0" if t == 0 else f"v[{D}:{D+3}]"))
    A.c("---- q projection: 16 columns x 4 rows ----")
    gemm(14, "v51", L_WQ, 1024, 128, AF, 32)
    A("v_lshlrev_b32 v44, 2, v0")
    A("s_lshl_b32 s12, s73, 2"); A(f"s_add_u32 s12, s12, {WS_QG}")
    for b in range(4):
        A(f"v_mov_b32_dpp v{36+2*b}, v{32+b} quad_perm:[1,0,3,2] {DPP}")
    for b in range(4):
        A(f"v_cvt_pk_bf16_f32 v{36+2*b}, v{32+b}, v{36+2*b}"); A(f"v_mov_b32 v{37+2*b}, s10")
    A("s_mov_b64 exec, 0x5555")
    for b in range(4):
        A(f"buffer_store_dwordx2 v[{36+2*b}:{37+2*b}], v44, s[40:43], s12 offen sc1")
        if b < 3: A("s_add_u32 s12, s12, 16384")
    A("s_mov_b64 exec, -1")
    stamp(0)
    for r in range(4): A(f"v_mov_b32 v{8+r}, -1")
    A("s_lshl_b32 s71, s8, 3"); A("s_add_u32 s71, s71, s7"); A("s_lshl_b32 s71, s71, 11"); A(f"s_add_u32 s71, s71, {WS_M1}")
    A("s_lshl_b32 s72, s6, 6"); A("s_add_u32 s72, s72, s9"); A("s_lshl_b32 s72, s72, 11"); A(f"s_add_u32 s72, s72, {WS_M2}")
    for s_ in ("s71", "s72"):
        for o in (0, 1024): A(f"buffer_store_dwordx4 v[8:11], v1, s[40:43], {s_} offen offset:{o} sc1")
    A.c("---- gather q of my two heads ----")
    A("s_lshl_b32 s12, s6, 14"); A("s_lshl_b32 s14, s4, 11"); A("s_add_u32 s12, s12, s14"); A(f"s_add_u32 s12, s12, {WS_QG}")
    n = poll_begin()
    A("buffer_load_dwordx4 v[32:35], v1, s[40:43], s12 offen sc1")
    A("buffer_load_dwordx4 v[36:39], v1, s[40:43], s12 offen offset:1024 sc1")
    A("s_waitcnt vmcnt(0)")
    A("v_xor_b32 v40, s10, v33"); A("v_xor_b32 v41, s10, v35"); A("v_xor_b32 v42, s10, v37"); A("v_xor_b32 v43, s10, v39")
    A("v_or3_b32 v40, v40, v41, v42"); A("v_or_b32 v40, v40, v43")
    A("v_cmp_ne_u32 vcc, 0, v40")
    poll_end(n, slq)
    A("v_lshlrev_b32 v40, 3, v0"); A(f"v_add_u32 v40, {L_Q}, v40")
    A("ds_write2_b32 v40, v32, v34 offset0:0 offset1:1")
    A("ds_write2_b32 v40, v36, v38 offset0:128 offset1:129")
    A(f"v_mov_b32 v41, {L_NONCE}"); A("v_mov_b32 v42, s10"); A("ds_write_b32 v41, v42")
    A("s_lshl_b32 s12, s6, 6"); A("s_add_u32 s12, s12, s9"); A("s_lshl_b32 s12, s12, 2"); A(f"s_add_u32 s12, s12, {WS_RDY}")
    A("v_mov_b32 v43, 0")
    A("s_mov_b64 exec, 1")
    A("buffer_store_dword v42, v43, s[40:43], s12 offen sc1")
    A("s_mov_b64 exec, -1")
    A("s_waitcnt lgkmcnt(0)")
    stamp(0)
    A("s_barrier")
    if ffn:
        A("s_lshl_b32 s12, s76, 4")
        for t in range(7):
            A(f"s_mov_b32 m0, {L_W1 + t*1024}")
            if t: A(f"s_add_u32 s12, s12, {64*3584}")
            else: A("s_nop 0")
            A(f"buffer_load_dwordx4 v13, s[52:55], s12 offen{fmod} lds")
            A(f"s_mov_b32 m0, {L_W3 + t*1024}")
            A("s_nop 0")
            A(f"buffer_load_dwordx4 v13, s[56:59], s12 offen{fmod} lds")
        A(f"s_mul_i32 s12, s4, {224*896}"); A("s_lshl_b32 s14, s5, 5"); A("s_add_u32 s12, s12, s14")
        for t in range(7):
            A(f"s_mov_b32 m0, {L_W2 + t*1024}")
            if t: A(f"s_add_u32 s12, s12, {32*896}")
            else: A("s_nop 0")
            A(f"buffer_load_dwordx4 v14, s[60:63], s12 offen{fmod} lds")
    A.c("---- gate / up projection: 8 + 8 columns ----")
    A("s_cmp_ge_u32 s5, 28"); A("s_cbranch_scc1 L_noffn1")
    if not ffn: A("s_branch L_noffn1")
    A("s_waitcnt vmcnt(7)")
    gemm(14, "v52", L_W1, 512, 64, AF, 32)
    A(f"s_mov_b32 s14, {f2u(-LOG2E)}")
    for b in range(4): bf16r(f"v{32+b}", f"v{32+b}")
    for b in range(4): A(f"v_mul_f32 v{36+b}, s14, v{32+b}")
    for b in range(4): A(f"v_exp_f32 v{36+b}, v{36+b}")
    for b in range(4): A(f"v_add_f32 v{36+b}, 1.0, v{36+b}")
    for b in range(4): A(f"v_rcp_f32 v{36+b}, v{36+b}")
    for b in range(4): A(f"v_mul_f32 v{36+b}, v{32+b}, v{36+b}")
    for b in range(4): bf16r(f"v{36+b}", f"v{36+b}")
    for b in range(4): A(f"v_mul_f32_dpp v{36+b}, v{32+b}, v{36+b} row_ror:8 {DPP}")
    for b in range(4): A(f"v_mov_b32_dpp v{40+2*b}, v{36+b} quad_perm:[1,0,3,2] {DPP}")
    for b in range(4):
        A(f"v_cvt_pk_bf16_f32 v{40+2*b}, v{36+b}, v{40+2*b}"); A(f"v_mov_b32 v{41+2*b}, s10")
    A("v_lshlrev_b32 v36, 2, v0")
    A("s_lshl_b32 s12, s76, 7"); A(f"s_add_u32 s12, s12, {WS_HG}")
    A("s_mov_b64 exec, 0x55")
    for b in range(4): A(f"buffer_store_dwordx2 v[{40+2*b}:{41+2*b}], v36, s[40:43], s12 offen offset:{32*b} sc1")
    A("s_mov_b64 exec, -1")
    A("L_noffn1:")
    stamp(0)
    A.c("---- down projection partial: 224 rows x 16 columns ----")
    A("s_cmp_ge_u32 s5, 28"); A("s_cbranch_scc1 L_noffn2")
    if not ffn: A("s_branch L_noffn2")
    A("s_mul_i32 s12, s4, 3584"); A(f"s_add_u32 s12, s12, {WS_HG}")
    A("v_add_u32 v40, 3072, v1"); A("v_add_u32 v41, 2048, v1"); A("v_cmp_lt_u32 vcc, 31, v0"); A("v_cndmask_b32 v40, v40, v41, vcc")
    n = poll_begin()
    for i in range(3): A(f"buffer_load_dwordx4 v[{16+4*i}:{19+4*i}], v1, s[40:43], s12 offen offset:{1024*i} sc1")
    A("buffer_load_dwordx4 v[28:31], v40, s[40:43], s12 offen sc1")
    A("s_waitcnt vmcnt(0)")
    for i in range(8): A(f"v_xor_b32 v{32+i}, s10, v{17+2*i}")
    A("v_or3_b32 v32, v32, v33, v34"); A("v_or3_b32 v35, v35, v36, v37"); A("v_or3_b32 v32, v32, v38, v39"); A("v_or_b32 v32, v32, v35")
    A("v_cmp_ne_u32 vcc, 0, v32")
    poll_end(n, 8)
    A("v_bfe_u32 v32, v0, 1, 2"); A("v_lshlrev_b32 v32, 9, v32"); A("v_lshrrev_b32 v33, 3, v0"); A("v_lshlrev_b32 v33, 4, v33")
    A("v_add_u32 v32, v32, v33"); A("v_and_b32 v33, 1, v0"); A("v_lshlrev_b32 v33, 3, v33"); A("v_add_u32 v32, v32, v33")
    A(f"v_add_u32 v32, {L_H}, v32")
    for i in range(3): A(f"ds_write2_b32 v32, v{16+4*i}, v{18+4*i} offset0:{32*i} offset1:{32*i+1}")
    A("s_mov_b32 exec_hi, 0")
    A("ds_write2_b32 v32, v28, v30 offset0:96 offset1:97")
    A("s_mov_b64 exec, -1")
    A("v_lshlrev_b32 v33, 9, v48"); A("v_lshlrev_b32 v34, 4, v4"); A("v_add_u32 v33, v33, v34")
    A("s_waitcnt lgkmcnt(0)")
    for t in range(7): A(f"ds_read_b128 v[{AF+4*t}:{AF+4*t+3}], v33 offset:{L_H + 64*t}")
    gemm(7, "v51", L_W2, 1024, 128, AF, 32)
    A("v_lshlrev_b32 v44, 3, v0")
    A("s_mul_i32 s12, s4, 448"); A("s_lshl_b32 s14, s5, 4"); A("s_add_u32 s12, s12, s14"); A("s_lshl_b32 s12, s12, 3"); A(f"s_add_u32 s12, s12, {WS_FG}")
    for b in range(4):
        A(f"v_mov_b32 v{36+2*b}, v{32+b}"); A(f"v_mov_b32 v{37+2*b}, s10")
    A("s_mov_b64 exec, 0xffff")
    for b in range(4):
        A(f"buffer_store_dwordx2 v[{36+2*b}:{37+2*b}], v44, s[40:43], s12 offen sc1")
        if b < 3: A(f"s_add_u32 s12, s12, {8*448*8}")
    A("s_mov_b64 exec, -1")
    A("L_noffn2:")
    stamp(0)
    A.c("---- every workgroup of my batch row has cleared its mailboxes (its ready tag is out) ----")
    A("v_lshlrev_b32 v32, 2, v0")
    A("s_lshl_b32 s12, s6, 8"); A(f"s_add_u32 s12, s12, {WS_RDY}")
    n = poll_begin()
    A("buffer_load_dword v33, v32, s[40:43], s12 offen sc1")
    A("s_waitcnt vmcnt(0)")
    A("v_cmp_ne_u32 vcc, s10, v33")
    poll_end(n, 8)
    A.c("---- gate value g for my 8 output columns ----")
    srd(64, 34, 3584)
    A("v_and_b32 v34, 1, v0")
    A("v_lshlrev_b32 v60, 3, v34")
    A("s_mul_i32 s77, s6, 896"); A("s_lshl_b32 s14, s9, 4"); A("s_add_u32 s77, s77, s14")
    A("s_cmp_ge_u32 s9, 56"); A("s_cbranch_scc1 L_nog")
    if not ffn: A("s_branch L_nog")
    A("v_bfe_u32 v32, v0, 1, 3"); A("v_mul_u32_u24 v32, 3584, v32"); A("v_lshlrev_b32 v33, 5, v34"); A("v_add_u32 v32, v32, v33")
    A(f"s_mul_i32 s12, s6, {8*448*8}"); A("s_lshl_b32 s14, s9, 6"); A("s_add_u32 s12, s12, s14"); A(f"s_add_u32 s12, s12, {WS_FG}")
    A("buffer_load_dwordx2 v[62:63], v60, s[44:47], s77 offen")
    n = poll_begin()
    A("buffer_load_dwordx4 v[16:19], v32, s[40:43], s12 offen sc1")
    A("buffer_load_dwordx4 v[20:23], v32, s[40:43], s12 offen offset:16 sc1")
    A("s_waitcnt vmcnt(0)")
    for i in range(4): A(f"v_xor_b32 v{24+i}, s10, v{17+2*i}")
    A("v_or3_b32 v24, v24, v25, v26"); A("v_or_b32 v24, v24, v27")
    A("v_cmp_ne_u32 vcc, 0, v24")
    poll_end(n, 8)
    for perm in ("quad_perm:[2,3,0,1]", "row_ror:4", "row_ror:8"):
        for i in range(4): A(f"v_add_f32_dpp v{16+2*i}, v{16+2*i}, v{16+2*i} {perm} {DPP}")
    A(f"s_mov_b32 s14, {f2u(-LOG2E)}")
    G = 56
    for i in range(4): bf16r(f"v{16+2*i}", f"v{16+2*i}")
    for i in range(4): A(f"v_mul_f32 v{G+i}, s14, v{16+2*i}")
    for i in range(4): A(f"v_exp_f32 v{G+i}, v{G+i}")
    for i in range(4): A(f"v_add_f32 v{G+i}, 1.0, v{G+i}")
    for i in range(4): A(f"v_rcp_f32 v{G+i}, v{G+i}")
    for i in range(4): A(f"v_mul_f32 v{G+i}, v{16+2*i}, v{G+i}")
    for i in range(4): bf16r(f"v{G+i}", f"v{G+i}")
    A("v_lshlrev_b32 v52, 16, v62"); A("v_and_b32 v53, 0xffff0000, v62"); A("v_lshlrev_b32 v54, 16, v63"); A("v_and_b32 v55, 0xffff0000, v63")
    A("L_nog:")
    A.c("---- softmax statistics of the whole row: per-wave factors exp(m_w - M) / L ----")
    A("s_lshl_b32 s12, s8, 10"); A(f"s_add_u32 s12, s12, {WS_ML}")
    n = poll_begin()
    A("buffer_load_dwordx4 v[16:19], v1, s[40:43], s12 offen sc1")
    A("s_waitcnt vmcnt(0)")
    A("v_xor_b32 v20, s10, v17"); A("v_xor_b32 v21, s10, v19"); A("v_or_b32 v20, v20, v21")
    A("v_cmp_ne_u32 vcc, 0, v20")
    poll_end(n, 8)
    A("v_mov_b32 v20, v16")
    for perm in ("quad_perm:[2,3,0,1]", "row_ror:4", "row_ror:8"): A(f"v_max_f32_dpp v20, v20, v20 {perm} {DPP}")
    xrow("v_max_f32", ["v20"], ["v21"])
    A(f"s_mov_b32 s14, {f2u(LOG2E/16)}")
    A("v_sub_f32 v20, v16, v20"); A("v_mul_f32 v20, s14, v20"); A("v_exp_f32 v20, v20")
    A("v_mul_f32 v21, v20, v18")
    for perm in ("quad_perm:[2,3,0,1]", "row_ror:4", "row_ror:8"): A(f"v_add_f32_dpp v21, v21, v21 {perm} {DPP}")
    xrow("v_add_f32", ["v21"], ["v22"])
    A("v_rcp_f32 v21, v21"); A("v_mul_f32 v20, v20, v21")
    A("v_and_b32 v22, 1, v0"); A("v_lshlrev_b32 v22, 7, v22"); A("v_lshrrev_b32 v23, 1, v0"); A("v_lshlrev_b32 v23, 2, v23"); A("v_add_u32 v22, v22, v23")
    A(f"ds_write_b32 v22, v20 offset:{L_C}")
    A("s_lshl_b32 s12, s7, 4"); A("v_mov_b32 v22, s12")
    A("s_waitcnt lgkmcnt(0)")
    A(f"ds_read_b128 v[24:27], v22 offset:{L_C}"); A(f"ds_read_b128 v[28:31], v22 offset:{L_C+128}")
    A("v_lshrrev_b32 v22, 3, v0"); A("v_lshlrev_b32 v22, 11, v22"); A("v_and_b32 v23, 7, v0"); A("v_lshlrev_b32 v23, 4, v23"); A("v_add_u32 v22, v22, v23")
    A("s_lshl_b32 s12, s8, 14"); A("s_lshl_b32 s14, s7, 8"); A("s_add_u32 s12, s12, s14"); A(f"s_add_u32 s12, s12, {WS_M1}")
    A("s_waitcnt lgkmcnt(0)")
    stamp(0)
    A("s_barrier")
    A.c("---- combine the four waves, publish the normalised partial ----")
    for h in range(2):
        for w in range(4):
            r = 64 + 16 * h + 4 * w
            A(f"ds_read_b128 v[{r}:{r+3}], v1 offset:{L_ACC + w*2048 + h*1024}")
    for h in range(2):
        A(f"s_waitcnt lgkmcnt({4 if h == 0 else 0})")
        r0 = 64 + 16 * h
        for e in range(4): A(f"v_mul_f32 v{r0+e}, v{24+4*h}, v{r0+e}")
        for w in range(1, 4):
            for e in range(4): A(f"v_fmac_f32 v{r0+e}, v{24+4*h+w}, v{r0+4*w+e}")
        for e in range(4): A(f"v_min_u32 v{r0+e}, -2, v{r0+e}")
        A(f"buffer_store_dwordx4 v[{r0}:{r0+3}], v22, s[40:43], s12 offen offset:{128*h} sc1")
    stamp(0)
    A("s_barrier")
    A("s_cmp_ge_u32 s9, 56"); A("s_cbranch_scc1 L_fin")
    A.c("---- hand-off 2: sum the 64 projected partials of my 8 columns, gate, residual ----")
    n = poll_begin()
    A("buffer_load_dwordx4 v[16:19], v1, s[40:43], s72 offen sc1")
    A("buffer_load_dwordx4 v[20:23], v1, s[40:43], s72 offen offset:1024 sc1")
    A("s_waitcnt vmcnt(0)")
    A("v_max3_u32 v24, v16, v17, v18"); A("v_max3_u32 v25, v19, v20, v21"); A("v_max3_u32 v24, v24, v22, v23"); A("v_max_u32 v24, v24, v25")
    A("v_cmp_eq_u32 vcc, -1, v24")
    poll_end(n, sl2)
    for e in range(4): A(f"v_add_f32 v{16+e}, v{16+e}, v{20+e}")
    for perm in ("quad_perm:[2,3,0,1]", "row_ror:4", "row_ror:8"):
        for e in range(4): A(f"v_add_f32_dpp v{16+e}, v{16+e}, v{16+e} {perm} {DPP}")
    xrow("v_add_f32", [f"v{16+e}" for e in range(4)], [f"v{20+e}" for e in range(4)])
    for e in range(4): bf16r(f"v{16+e}", f"v{16+e}")
    for e in range(4): A(f"v_mul_f32 v{16+e}, v{16+e}, v{G+e}")
    for e in range(4): bf16r(f"v{16+e}", f"v{16+e}")
    for e in range(4): A(f"v_add_f32 v{16+e}, v{52+e}, v{16+e}")
    A("v_cvt_pk_bf16_f32 v16, v16, v17"); A("v_cvt_pk_bf16_f32 v17, v18, v19")
    A("s_mov_b64 exec, 3")
    A("buffer_store_dwordx2 v[16:17], v60, s[64:67], s77 offen")
    A("s_cmp_lg_u32 s2, 0"); A("s_cbranch_scc1 L_fin")
    A("s_mov_b64 exec, 1")
    A("v_mov_b32 v18, 0"); A("v_mov_b32 v19, s10")
    A("buffer_store_dword v19, v18, s[40:43], 0 offen sc1")
    A("L_fin:")
    stamp(0)
    dump_stamps(nst[0])
    A("L_end:"); A("s_endpgm")
    A('.section .rodata,"a"'); A(".p2align 6"); A(f".amdhsa_kernel {KNAME}")
    A("  .amdhsa_next_free_vgpr 256"); A("  .amdhsa_next_free_sgpr 102"); A("  .amdhsa_accum_offset 256")
    A("  .amdhsa_group_segment_fixed_size 0"); A("  .amdhsa_kernarg_size 96"); A("  .amdhsa_user_sgpr_count 2")
    A("  .amdhsa_user_sgpr_kernarg_segment_ptr 1"); A("  .amdhsa_system_sgpr_workgroup_id_x 1"); A(".end_amdhsa_kernel")
    text, npad = A.text()
    lines = text.split("\n")
    return HEADER + "\n".join(lines)

if __name__ == "__main__":
    import json
    kw = json.loads(sys.argv[2]) if len(sys.argv) > 2 else {}
    open(sys.argv[1], "w").write(gen(**kw))
```

```python
import sys
from asmlib import Asm
KNAME = "recurrent_scan__gqa_block_cached__glu_gated_swiglu__decode_kernel"

WS_EPOCH = 0
WS_QG = 0x1000
WS_HG = 0x20000
WS_FG = 0x30000
WS_ML = 0x50000
WS_RDY = 0x60000
WS_M1 = 0x80000
WS_M2 = 0x100000
WS_ST = 0x200000
WS_SIZE = 0x400000
L_WQ = 0
L_W1 = 14336
L_W3 = 21504
L_W2 = 28672
L_XN = 35840
L_Q = 39936
L_NONCE = 40960
L_C = 40976 + 16 - 16 + 0
L_C = 41088
L_H = 41472
L_ACC = 43520
L_PP = 51712
L_TOTAL = 53760
SPIN = 40000
LOG2E = 1.4426950408889634

import struct
def f2u(x): return struct.unpack("<I", struct.pack("<f", x))[0]

HEADER = """; Kernarg layout (96 bytes): 0 A_x, 8 A_k_cache, 16 A_v_cache, 24 A_wq, 32 A_wo, 40 B_x (unused by the reference),
"""

def gen(D0=8, R=44, CU=2, kmod=" nt", vmod=" nt", wmod="", womod="", diag=False, wo_at=0, ffn=True, sl1=2, sl2=1, slq=2, fmod=None, nowo=False, nowq=False, nof13=False, nof2=False, dbg=False):
    A = Asm()
    if fmod is None: fmod = wmod
    if dbg: diag = True
    nst = [0]
    def stamp(role_off):
        if diag:
            k = nst[0]; nst[0] += 1
            A(f"s_memrealtime s[{82+2*k}:{83+2*k}]")
    def dump_stamps(n):
        if not diag: return
        A("s_waitcnt vmcnt(0) lgkmcnt(0)")
        if dbg:
            srd(44, 36, 256)
            A("s_mov_b64 exec, 1")
            A("v_mov_b32 v4, 0")
            A("s_not_b32 s12, s82"); A("v_mov_b32 v6, s12")
            A("buffer_atomic_umax v6, v4, s[44:47], 0 offen")
            base = 0 if n == 10 else 8
            sel = [3, 4, 5, 7, 8, 9] if n == 10 else [1, 2, 3, 5, 6, 7]
            for z, k in enumerate(sel):
                A(f"v_mov_b32 v{8+z}, s{82+2*k}")
                A(f"buffer_atomic_umax v{8+z}, v4, s[44:47], 0 offen offset:{4*(base+1+z)}")
            return
        A("s_mul_i32 s12, s2, 5"); A("s_add_u32 s12, s12, s3"); A("s_lshl_b32 s12, s12, 6")
        A(f"s_add_u32 s12, s12, {WS_ST}")
        A("s_mov_b64 exec, 1")
        A("v_mov_b32 v4, 0")
        for q in range(0, 10, 2):
            for e in range(2):
                k = q + e
                A(f"v_mov_b32 v{6+e}, s{82+2*k}" if k < n else f"v_mov_b32 v{6+e}, 0")
            A(f"buffer_store_dwordx2 v[6:7], v4, s[40:43], s12 offen offset:{q*4}")
            A("s_nop 1")
    def srd(d, p, size):
        A(f"s_mov_b32 s{d}, s{p}"); A(f"s_mov_b32 s{d+1}, s{p+1}")
        A(f"s_mov_b32 s{d+2}, {size}"); A(f"s_mov_b32 s{d+3}, 0x20000")
    lab = [0]
    def poll_begin():
        lab[0] += 1
        A(f"s_mov_b32 s11, {SPIN}")
        A(f"L_poll{lab[0]}:")
        return lab[0]
    def poll_end(n, sleep):
        A(f"s_cbranch_vccz L_done{n}")
        A("s_sub_u32 s11, s11, 1")
        A(f"s_cbranch_scc1 L_done{n}")
        if sleep: A(f"s_sleep {sleep}")
        A(f"s_branch L_poll{n}")
        A(f"L_done{n}:")
    DPP = "row_mask:0xf bank_mask:0xf"
    def bf16r(dst, src):
        A(f"v_cvt_pk_bf16_f32 {dst}, {src}, {src}")
        A(f"v_and_b32 {dst}, 0xffff0000, {dst}")
    def xrow(op, regs, tmps):
        for sw in ("v_permlane16_swap_b32", "v_permlane32_swap_b32"):
            for r, t in zip(regs, tmps): A(f"v_mov_b32 {t}, {r}")
            for r, t in zip(regs, tmps): A(f"{sw} {r}, {t}")
            for r, t in zip(regs, tmps): A(f"{op} {r}, {r}, {t}")

    A(f"; @launch grid=(256,1,1) block=(320,1,1) lds={L_TOTAL}")
    A('.amdgcn_target "amdgcn-amd-amdhsa--gfx950"')
    A(".text"); A(f".globl {KNAME}"); A(".p2align 8"); A(f".type {KNAME},@function"); A(f"{KNAME}:")
    A("s_cmp_ge_u32 s2, 256"); A("s_cbranch_scc1 L_end")
    A("s_load_dwordx16 s[16:31], s[0:1], 0")
    A("s_load_dwordx8 s[32:39], s[0:1], 64")
    stamp(0)
    A("v_lshrrev_b32 v1, 6, v0"); A("v_and_b32 v0, 63, v0")
    A("v_readfirstlane_b32 s3, v1")
    A("s_and_b32 s4, s2, 7")
    A("s_lshr_b32 s5, s2, 3")
    A("s_lshr_b32 s6, s5, 3")
    A("s_and_b32 s7, s5, 7")
    A("s_lshl_b32 s8, s6, 3"); A("s_add_u32 s8, s8, s4")
    A("s_lshl_b32 s9, s4, 3"); A("s_add_u32 s9, s9, s7")
    A("v_lshrrev_b32 v4, 4, v0")
    A("v_and_b32 v5, 15, v0")
    A("s_waitcnt lgkmcnt(0)")
    srd(40, 38, WS_SIZE)
    A("s_cmp_eq_u32 s3, 0"); A("s_cbranch_scc1 L_helper")

    A.c("================ stream waves ================")
    A("s_sub_u32 s13, s3, 1")
    srd(44, 18, 0x4000000); srd(48, 20, 0x4000000)
    A("v_lshlrev_b32 v1, 6, v4"); A("v_bfe_u32 v6, v0, 2, 2"); A("v_lshlrev_b32 v6, 9, v6")
    A("v_and_b32 v7, 3, v0"); A("v_lshlrev_b32 v2, 4, v7"); A("v_add3_u32 v1, v1, v6, v2")
    A("s_lshl_b32 s68, s8, 21"); A("s_lshl_b32 s12, s7, 18"); A("s_add_u32 s68, s68, s12")
    A("s_lshl_b32 s12, s13, 11"); A("s_add_u32 s68, s68, s12")
    A("s_mov_b32 s69, s68")
    RING0 = 80
    free = list(range((256 - RING0) // 4))
    assert R <= len(free)
    items = [("k", i) for i in range(64)]
    vi = [("v", i) for i in range(64)]
    wi = [("w", i) for i in range(16)]
    rest = []
    for i, it in enumerate(vi):
        rest.append(it)
        if i >= wo_at and (i - wo_at) % 2 == 1 and wi: rest.append(wi.pop(0))
    rest += wi
    items += rest
    pos = {it: n for n, it in enumerate(items)}
    reg = {}
    issued = [0]
    def issue():
        it = items[issued[0]]
        q = free.pop(0); reg[it] = RING0 + 4 * q
        r = reg[it]
        t, i = it
        if t == "k":
            if i % 2 == 0 and i > 0: A("s_add_u32 s68, s68, 8192")
            A(f"buffer_load_dwordx4 v[{r}:{r+3}], v1, s[44:47], s68 offen offset:{(i%2)*256}{kmod}")
        elif t == "v":
            if i % 2 == 0 and i > 0: A("s_add_u32 s69, s69, 8192")
            A(f"buffer_load_dwordx4 v[{r}:{r+3}], v2, s[48:51], s69 offen offset:{(i%2)*256}{vmod}")
        else:
            h, tt = i // 8, i % 8
            if i > 0: A(f"s_add_u32 s70, s70, {896 if tt else 896*(256-7)}")
            A(f"buffer_load_dwordx4 v[{r}:{r+3}], v3, s[52:55], s70 offen{womod}")
        issued[0] += 1
    def release(it):
        free.append((reg[it] - RING0) // 4)
    def wait_for(it):
        n = issued[0] - 1 - pos[it]
        assert n >= 0
        A(f"s_waitcnt vmcnt({min(n,63)})")
    for n in range(D0): issue()
    A("v_lshlrev_b32 v2, 9, v4"); A("v_lshlrev_b32 v6, 4, v5"); A("v_add_u32 v2, v2, v6")
    srd(52, 24, 0 if nowo else 4096 * 896)
    A("v_mul_u32_u24 v3, 7168, v4"); A("v_add_u32 v3, v3, v6")
    A("v_mov_b32 v7, 0x40000000"); A("v_cmp_lt_u32 vcc, 13, v5"); A("v_cndmask_b32 v3, v3, v7, vcc")
    A("s_lshl_b32 s70, s4, 9"); A("s_lshl_b32 s12, s7, 5"); A("s_add_u32 s70, s70, s12"); A("s_mul_i32 s70, s70, 896")
    A("s_mul_i32 s12, s13, 224"); A("s_add_u32 s70, s70, s12")
    A("v_and_b32 v6, 1, v0"); A("v_mov_b32 v7, 0xffff"); A("v_mov_b32 v8, 0xffff0000")
    A("v_cmp_eq_u32 vcc, 1, v6"); A("v_cndmask_b32 v7, v7, v8, vcc")
    A("v_bfe_u32 v6, v0, 1, 2")
    for r in range(4):
        A(f"v_cmp_eq_u32 vcc, {r}, v6"); A(f"v_cndmask_b32 v{16+r}, 0, v7, vcc")
    for r in range(8): A(f"v_mov_b32 v{20+r}, 0")
    A("v_bfe_u32 v6, v0, 3, 1"); A("v_lshlrev_b32 v6, 9, v6"); A("v_lshlrev_b32 v7, 6, v4"); A("v_add_u32 v6, v6, v7")
    A("v_and_b32 v7, 3, v0"); A("v_lshlrev_b32 v7, 4, v7"); A("v_add_u32 v6, v6, v7")
    A(f"v_mov_b32 v7, {L_NONCE}")
    A("v_mov_b32 v76, 0xff800000")
    while issued[0] < R:
        A(f"s_waitcnt vmcnt({D0-1})"); issue()
    stamp(0)
    A("s_barrier")
    A(f"ds_read_b128 v[8:11], v6 offset:{L_Q}"); A(f"ds_read_b128 v[12:15], v6 offset:{L_Q+256}")
    A("ds_read_b32 v77, v7")
    A("s_waitcnt lgkmcnt(0)")
    stamp(0)
    SC = 44
    def qk_reduce(u):
        d = 28 + 4 * (u % 2)
        A(f"v_mov_b32_dpp v4, v{d} quad_perm:[0,0,0,0] {DPP}")
        A(f"v_mov_b32_dpp v5, v{d+2} quad_perm:[2,2,2,2] {DPP}")
        A("s_nop 0")
        A(f"v_add_f32_dpp v4, v{d+1}, v4 quad_perm:[1,1,1,1] {DPP}")
        A(f"v_add_f32_dpp v5, v{d+3}, v5 quad_perm:[3,3,3,3] {DPP}")
        A(f"v_add_f32 v{SC+u}, v4, v5")
        if u % 2 == 1: A(f"v_max3_f32 v76, v76, v{SC+u-1}, v{SC+u}")
    def paced_issue():
        if issued[0] < len(items) and free:
            A(f"s_waitcnt vmcnt({D0-1})"); issue(); return True
        return False
    def landed():
        return issued[0] - 1 - D0
    u = 0
    while u < 32:
        k1 = ("k", 2*u+1)
        while pos[k1] > landed() and paced_issue(): pass
        burst = 0
        while u < 32 and burst < CU and (pos[("k", 2*u+1)] <= landed() or burst == 0):
            k0, k1 = ("k", 2*u), ("k", 2*u+1)
            if pos[k1] > landed(): wait_for(k1)
            d = 28 + 4 * (u % 2)
            A(f"v_mfma_f32_16x16x32_bf16 v[{d}:{d+3}], v[{reg[k0]}:{reg[k0]+3}], v[8:11], 0")
            A(f"v_mfma_f32_16x16x32_bf16 v[{d}:{d+3}], v[{reg[k1]}:{reg[k1]+3}], v[12:15], v[{d}:{d+3}]")
            release(k0); release(k1)
            if u > 0: qk_reduce(u - 1)
            u += 1; burst += 1
        if u < 32 and pos[("k", 2*u+1)] <= landed(): paced_issue()
    qk_reduce(31)
    stamp(0)
    A.c("---- softmax over this wave's 128 keys ----")
    xrow("v_max_f32", ["v76"], ["v4"])
    bf16r("v76", "v76")
    A(f"s_mov_b32 s12, {f2u(LOG2E/16)}")
    A("v_mov_b32 v78, 0"); A("v_mov_b32 v79, 0")
    for u in range(0, 32, 2):
        a, b_ = SC + u, SC + u + 1
        A(f"v_cvt_pk_bf16_f32 v4, v{a}, v{b_}")
        A(f"v_lshlrev_b32 v{a}, 16, v4"); A(f"v_and_b32 v{b_}, 0xffff0000, v4")
        A(f"v_sub_f32 v{a}, v{a}, v76"); A(f"v_sub_f32 v{b_}, v{b_}, v76")
        A(f"v_mul_f32 v{a}, s12, v{a}"); A(f"v_mul_f32 v{b_}, s12, v{b_}")
        A(f"v_exp_f32 v{a}, v{a}"); A(f"v_exp_f32 v{b_}, v{b_}")
        A(f"v_add_f32 v78, v78, v{a}"); A(f"v_add_f32 v79, v79, v{b_}")
        A(f"v_cvt_pk_bf16_f32 v{a}, v{a}, v{a}"); A(f"v_cvt_pk_bf16_f32 v{b_}, v{b_}, v{b_}")
        if u % 8 == 6: paced_issue()
    A("v_add_f32 v78, v78, v79")
    xrow("v_add_f32", ["v78"], ["v4"])
    A("v_mov_b32 v79, v77")
    A("v_lshlrev_b32 v4, 1, v0")
    A("s_lshl_b32 s12, s8, 10"); A("s_lshl_b32 s14, s7, 7"); A("s_add_u32 s12, s12, s14")
    A("s_lshl_b32 s14, s13, 5"); A("s_add_u32 s12, s12, s14"); A(f"s_add_u32 s12, s12, {WS_ML}")
    A("s_mov_b64 exec, 0x101")
    A("buffer_store_dwordx4 v[76:79], v4, s[40:43], s12 offen sc1")
    A("s_mov_b64 exec, -1")
    stamp(0)
    A.c("---- P.V ----")
    since = 0
    for u in range(32):
        v0_, v1_ = ("v", 2*u), ("v", 2*u+1)
        a = 36 + 4 * (u % 2)
        for r in range(4): A(f"v_and_b32 v{a+r}, v{16+r}, v{SC+u}")
        if pos[v1_] <= landed():
            since += 1
            if since >= CU: paced_issue(); since = 0
        while pos[v1_] > landed() and paced_issue(): pass
        if pos[v1_] > landed(): wait_for(v1_)
        A(f"v_mfma_f32_16x16x32_bf16 v[20:23], v[{a}:{a+3}], v[{reg[v0_]}:{reg[v0_]+3}], v[20:23]")
        A(f"v_mfma_f32_16x16x32_bf16 v[24:27], v[{a}:{a+3}], v[{reg[v1_]}:{reg[v1_]+3}], v[24:27]")
        release(v0_); release(v1_)
        if u == 28:
            A("v_lshrrev_b32 v4, 5, v0"); A("v_lshlrev_b32 v4, 10, v4")
            A("v_and_b32 v5, 15, v0"); A("v_lshlrev_b32 v6, 5, v5"); A("v_add_u32 v4, v4, v6")
            A("v_bfe_u32 v6, v0, 4, 1"); A("v_lshlrev_b32 v6, 4, v6"); A("v_add_u32 v4, v4, v6")
            A("s_lshl_b32 s12, s13, 11"); A(f"s_add_u32 s12, s12, {L_ACC}"); A("v_add_u32 v4, s12, v4")
            A("v_and_b32 v5, 7, v0"); A("v_lshlrev_b32 v5, 8, v5"); A("v_bfe_u32 v6, v0, 3, 1"); A("v_lshlrev_b32 v6, 7, v6")
            A("v_add_u32 v5, v5, v6"); A("v_lshrrev_b32 v6, 4, v0"); A("v_lshlrev_b32 v6, 5, v6"); A("v_add_u32 v5, v5, v6")
            A("s_lshl_b32 s71, s8, 3"); A("s_add_u32 s71, s71, s7"); A("s_lshl_b32 s71, s71, 11"); A(f"s_add_u32 s71, s71, {WS_M1}")
            A("v_and_b32 v7, 15, v0"); A("v_lshlrev_b32 v7, 11, v7"); A("v_bfe_u32 v6, v0, 4, 1"); A("v_lshlrev_b32 v6, 4, v6"); A("v_add_u32 v7, v7, v6")
            A("s_lshl_b32 s72, s6, 6"); A("s_mul_i32 s12, s13, 14"); A("s_add_u32 s72, s72, s12"); A("s_lshl_b32 s72, s72, 11")
            A("s_lshl_b32 s12, s9, 5"); A("s_add_u32 s72, s72, s12"); A(f"s_add_u32 s72, s72, {WS_M2}")
    assert issued[0] == len(items)
    stamp(0)
    A("ds_write_b128 v4, v[20:23]"); A("ds_write_b128 v4, v[24:27] offset:512")
    A("s_waitcnt lgkmcnt(0)")
    A("s_barrier")
    A.c("---- hand-off 1: gather the 8 splits of my 64 rows (wave 1 polls), project through wo ----")
    A(f"v_lshlrev_b32 v6, 4, v0")
    A("s_cmp_lg_u32 s13, 0"); A("s_cbranch_scc1 L_nopoll1")
    n = poll_begin()
    A("buffer_load_dwordx4 v[44:47], v5, s[40:43], s71 offen sc1")
    A("buffer_load_dwordx4 v[48:51], v5, s[40:43], s71 offen offset:16 sc1")
    A("s_waitcnt vmcnt(0)")
    A("v_max3_u32 v9, v44, v45, v46"); A("v_max3_u32 v8, v47, v48, v49"); A("v_max3_u32 v9, v9, v50, v51"); A("v_max_u32 v9, v9, v8")
    A("v_cmp_eq_u32 vcc, -1, v9")
    poll_end(n, sl1)
    for perm in ("quad_perm:[1,0,3,2]", "quad_perm:[2,3,0,1]", "row_half_mirror"):
        for t in range(8): A(f"v_add_f32_dpp v{44+t}, v{44+t}, v{44+t} {perm} {DPP}")
    for t in range(8): A(f"v_cvt_pk_bf16_f32 v{44+t}, v{44+t}, v{44+t}")
    A(f"ds_write_b128 v6, v[44:47] offset:{L_PP}"); A(f"ds_write_b128 v6, v[48:51] offset:{L_PP+1024}")
    A("s_waitcnt lgkmcnt(0)")
    A("L_nopoll1:")
    A("s_barrier")
    A(f"ds_read_b128 v[44:47], v6 offset:{L_PP}"); A(f"ds_read_b128 v[48:51], v6 offset:{L_PP+1024}")
    A("s_waitcnt vmcnt(0) lgkmcnt(0)")
    stamp(0)
    for t in range(8):
        a = 52 + 4 * (t % 4)
        for r in range(4): A(f"v_and_b32 v{a+r}, v{16+r}, v{44+t}")
        w0, w1 = reg[("w", t)], reg[("w", 8 + t)]
        A(f"v_mfma_f32_16x16x32_bf16 v[28:31], v[{a}:{a+3}], v[{w0}:{w0+3}], " + ("0" if t == 0 else "v[28:31]"))
        A(f"v_mfma_f32_16x16x32_bf16 v[32:35], v[{a}:{a+3}], v[{w1}:{w1+3}], " + ("0" if t == 0 else "v[32:35]"))
    for r in range(4): A(f"v_permlane32_swap_b32 v{32+r}, v{36+r}")
    for r in range(4): A(f"v_add_f32 v{28+r}, v{28+r}, v{36+r}")
    for r in range(4): A(f"v_min_u32 v{28+r}, -2, v{28+r}")
    A("s_mov_b64 exec, 0x3fff3fff")
    A("buffer_store_dwordx4 v[28:31], v7, s[40:43], s72 offen sc1")
    stamp(0)
    dump_stamps(nst[0])
    A("s_endpgm")

    nst[0] = 1
    A.c("================ helper wave ================")
    A("L_helper:")
    A("s_setprio 3")
    A("s_load_dword s10, s[38:39], 0")
    srd(44, 16, 3584); srd(48, 22, 0 if nowq else 448 * 8192)
    A("v_lshlrev_b32 v1, 4, v0")
    A("v_mul_u32_u24 v2, 896, v4"); A("v_lshlrev_b32 v6, 6, v5"); A("v_add_u32 v2, v2, v6")
    A("v_mov_b32 v7, 0x40000000"); A("v_cmp_lt_u32 s[74:75], 13, v5"); A("v_cndmask_b32 v2, v2, v7, s[74:75]")
    X = 16
    for t in range(4): A(f"buffer_load_dwordx4 v[{X+4*t}:{X+4*t+3}], v2, s[44:47], 0 offen offset:{16*t}")
    A("v_lshrrev_b32 v3, 1, v0"); A("v_and_b32 v7, 1, v0"); A("v_lshlrev_b32 v7, 4, v7")
    A("v_lshlrev_b32 v12, 13, v3"); A("v_add_u32 v12, v12, v7")
    A("s_lshl_b32 s73, s4, 9"); A("s_lshl_b32 s12, s5, 4"); A("s_add_u32 s73, s73, s12")
    A("s_lshl_b32 s12, s73, 1")
    for t in range(14):
        A(f"s_mov_b32 m0, {L_WQ + t*1024}")
        if t: A(f"s_add_u32 s12, s12, {32*8192}")
        else: A("s_nop 0")
        A(f"buffer_load_dwordx4 v12, s[48:51], s12 offen{wmod} lds")
    srd(52, 28, 0 if nof13 else 448 * 3584); srd(56, 30, 0 if nof13 else 448 * 3584); srd(60, 32, 0 if nof2 else 1792 * 896)
    A("s_cmp_lt_u32 s5, 28")
    A("s_cselect_b32 s54, s54, 0"); A("s_cselect_b32 s58, s58, 0"); A("s_cselect_b32 s62, s62, 0")
    A("v_mul_u32_u24 v13, 3584, v0")
    A("v_mul_u32_u24 v14, 896, v3"); A("v_add_u32 v14, v14, v7")
    A("s_mul_i32 s76, s4, 28"); A("s_add_u32 s76, s76, s5")
    A("v_lshlrev_b32 v15, 10, v4"); A("v_add_u32 v15, v15, v6")
    A("v_and_b32 v48, 3, v0"); A("v_lshlrev_b32 v49, 10, v48"); A("v_lshlrev_b32 v50, 4, v4"); A("v_add_u32 v49, v49, v50")
    A("v_bfe_u32 v50, v0, 2, 2"); A("v_lshlrev_b32 v51, 3, v4"); A("v_add_u32 v50, v50, v51")
    A("v_lshlrev_b32 v51, 5, v50"); A("v_lshlrev_b32 v52, 3, v48"); A("v_add_u32 v51, v51, v52")
    A("v_lshlrev_b32 v52, 4, v50"); A("v_and_b32 v53, 1, v0"); A("v_lshlrev_b32 v53, 3, v53"); A("v_add_u32 v52, v52, v53")
    A("v_bfe_u32 v53, v0, 1, 1"); A("v_mul_u32_u24 v53, 7168, v53"); A("v_add_u32 v52, v52, v53")
    A("s_waitcnt vmcnt(14) lgkmcnt(0)")
    A("s_add_u32 s10, s10, 1")
    stamp(0)
    A.c("---- LayerNorm (bf16 rounding after every op, as the reference) ----")
    F = 64
    for i in range(16):
        A(f"v_lshlrev_b32 v{F+2*i}, 16, v{X+i}"); A(f"v_and_b32 v{F+2*i+1}, 0xffff0000, v{X+i}")
    A(f"v_pk_add_f32 v[32:33], v[{F}:{F+1}], v[{F+2}:{F+3}]"); A(f"v_pk_add_f32 v[34:35], v[{F+4}:{F+5}], v[{F+6}:{F+7}]")
    for i in range(4, 16, 2):
        A(f"v_pk_add_f32 v[32:33], v[32:33], v[{F+2*i}:{F+2*i+1}]"); A(f"v_pk_add_f32 v[34:35], v[34:35], v[{F+2*i+2}:{F+2*i+3}]")
    A("v_pk_add_f32 v[32:33], v[32:33], v[34:35]"); A("v_add_f32 v32, v32, v33")
    for k in (8, 4, 2, 1): A(f"v_add_f32_dpp v32, v32, v32 row_ror:{k} {DPP}")
    A(f"s_mov_b32 s12, {f2u(1.0/448)}")
    A("v_mul_f32 v32, s12, v32"); A("v_mov_b32 v33, v32")
    A("v_mov_b32 v34, 0"); A("v_mov_b32 v35, 0"); A("v_mov_b32 v36, 0"); A("v_mov_b32 v37, 0")
    for i in range(0, 16, 2):
        A(f"v_pk_add_f32 v[38:39], v[{F+2*i}:{F+2*i+1}], v[32:33] neg_lo:[0,1] neg_hi:[0,1]")
        A(f"v_pk_add_f32 v[40:41], v[{F+2*i+2}:{F+2*i+3}], v[32:33] neg_lo:[0,1] neg_hi:[0,1]")
        A("v_pk_fma_f32 v[34:35], v[38:39], v[38:39], v[34:35]"); A("v_pk_fma_f32 v[36:37], v[40:41], v[40:41], v[36:37]")
    A("v_pk_add_f32 v[34:35], v[34:35], v[36:37]"); A("v_add_f32 v34, v34, v35")
    A("v_cndmask_b32 v34, v34, 0, s[74:75]")
    for k in (8, 4, 2, 1): A(f"v_add_f32_dpp v34, v34, v34 row_ror:{k} {DPP}")
    A("v_mul_f32 v34, s12, v34")
    bf16r("v32", "v32"); A("v_mov_b32 v33, v32")
    bf16r("v34", "v34")
    A(f"v_add_f32 v34, {hex(f2u(1e-5))}, v34"); bf16r("v34", "v34")
    A("v_sqrt_f32 v34, v34"); bf16r("v34", "v34")
    A("v_rcp_f32 v34, v34"); A("v_mov_b32 v35, v34")
    for i in range(16):
        f = F + 2 * i
        A(f"v_pk_add_f32 v[{f}:{f+1}], v[{f}:{f+1}], v[32:33] neg_lo:[0,1] neg_hi:[0,1]")
    for i in range(16):
        f = F + 2 * i
        A(f"v_cvt_pk_bf16_f32 v{X+i}, v{f}, v{f+1}")
    for i in range(16):
        f = F + 2 * i
        A(f"v_lshlrev_b32 v{f}, 16, v{X+i}"); A(f"v_and_b32 v{f+1}, 0xffff0000, v{X+i}")
    for i in range(16):
        f = F + 2 * i
        A(f"v_pk_mul_f32 v[{f}:{f+1}], v[{f}:{f+1}], v[34:35]")
    for i in range(16):
        f = F + 2 * i
        A(f"v_cvt_pk_bf16_f32 v{X+i}, v{f}, v{f+1}")
    for t in range(4): A(f"ds_write_b128 v15, v[{X+4*t}:{X+4*t+3}] offset:{L_XN + 16*t}")
    A("s_waitcnt lgkmcnt(0)")
    AF = 64
    for t in range(14): A(f"ds_read_b128 v[{AF+4*t}:{AF+4*t+3}], v49 offset:{L_XN + 64*t}")
    A("s_waitcnt vmcnt(0)")
    stamp(0)
    BF = 128
    def gemm(nsteps, addr, base, step, second, af, D):
        for t0 in range(0, nsteps, 7):
            ts = range(t0, min(nsteps, t0 + 7))
            A("s_waitcnt lgkmcnt(0)")
            for t in ts:
                A(f"ds_read_b64_tr_b16 v[{BF+4*t}:{BF+4*t+1}], {addr} offset:{base + step*t}")
                A(f"ds_read_b64_tr_b16 v[{BF+4*t+2}:{BF+4*t+3}], {addr} offset:{base + step*t + second}")
        A("s_waitcnt lgkmcnt(0)")
        for t in range(nsteps):
            A(f"v_mfma_f32_16x16x32_bf16 v[{D}:{D+3}], v[{af+4*t}:{af+4*t+3}], v[{BF+4*t}:{BF+4*t+3}], " + ("0" if t == 0 else f"v[{D}:{D+3}]"))
    A.c("---- q projection: 16 columns x 4 rows ----")
    gemm(14, "v51", L_WQ, 1024, 128, AF, 32)
    A("v_lshlrev_b32 v44, 2, v0")
    A("s_lshl_b32 s12, s73, 2"); A(f"s_add_u32 s12, s12, {WS_QG}")
    for b in range(4):
        A(f"v_mov_b32_dpp v{36+2*b}, v{32+b} quad_perm:[1,0,3,2] {DPP}")
    for b in range(4):
        A(f"v_cvt_pk_bf16_f32 v{36+2*b}, v{32+b}, v{36+2*b}"); A(f"v_mov_b32 v{37+2*b}, s10")
    A("s_mov_b64 exec, 0x5555")
    for b in range(4):
        A(f"buffer_store_dwordx2 v[{36+2*b}:{37+2*b}], v44, s[40:43], s12 offen sc1")
        if b < 3: A("s_add_u32 s12, s12, 16384")
    A("s_mov_b64 exec, -1")
    stamp(0)
    for r in range(4): A(f"v_mov_b32 v{8+r}, -1")
    A("s_lshl_b32 s71, s8, 3"); A("s_add_u32 s71, s71, s7"); A("s_lshl_b32 s71, s71, 11"); A(f"s_add_u32 s71, s71, {WS_M1}")
    A("s_lshl_b32 s72, s6, 6"); A("s_add_u32 s72, s72, s9"); A("s_lshl_b32 s72, s72, 11"); A(f"s_add_u32 s72, s72, {WS_M2}")
    for s_ in ("s71", "s72"):
        for o in (0, 1024): A(f"buffer_store_dwordx4 v[8:11], v1, s[40:43], {s_} offen offset:{o} sc1")
    A.c("---- gather q of my two heads ----")
    A("s_lshl_b32 s12, s6, 14"); A("s_lshl_b32 s14, s4, 11"); A("s_add_u32 s12, s12, s14"); A(f"s_add_u32 s12, s12, {WS_QG}")
    n = poll_begin()
    A("buffer_load_dwordx4 v[32:35], v1, s[40:43], s12 offen sc1")
    A("buffer_load_dwordx4 v[36:39], v1, s[40:43], s12 offen offset:1024 sc1")
    A("s_waitcnt vmcnt(0)")
    A("v_xor_b32 v40, s10, v33"); A("v_xor_b32 v41, s10, v35"); A("v_xor_b32 v42, s10, v37"); A("v_xor_b32 v43, s10, v39")
    A("v_or3_b32 v40, v40, v41, v42"); A("v_or_b32 v40, v40, v43")
    A("v_cmp_ne_u32 vcc, 0, v40")
    poll_end(n, slq)
    A("v_lshlrev_b32 v40, 3, v0"); A(f"v_add_u32 v40, {L_Q}, v40")
    A("ds_write2_b32 v40, v32, v34 offset0:0 offset1:1")
    A("ds_write2_b32 v40, v36, v38 offset0:128 offset1:129")
    A(f"v_mov_b32 v41, {L_NONCE}"); A("v_mov_b32 v42, s10"); A("ds_write_b32 v41, v42")
    A("s_lshl_b32 s12, s6, 6"); A("s_add_u32 s12, s12, s9"); A("s_lshl_b32 s12, s12, 2"); A(f"s_add_u32 s12, s12, {WS_RDY}")
    A("v_mov_b32 v43, 0")
    A("s_mov_b64 exec, 1")
    A("buffer_store_dword v42, v43, s[40:43], s12 offen sc1")
    A("s_mov_b64 exec, -1")
    A("s_waitcnt lgkmcnt(0)")
    stamp(0)
    A("s_barrier")
    if ffn:
        A("s_lshl_b32 s12, s76, 4")
        for t in range(7):
            A(f"s_mov_b32 m0, {L_W1 + t*1024}")
            if t: A(f"s_add_u32 s12, s12, {64*3584}")
            else: A("s_nop 0")
            A(f"buffer_load_dwordx4 v13, s[52:55], s12 offen{fmod} lds")
            A(f"s_mov_b32 m0, {L_W3 + t*1024}")
            A("s_nop 0")
            A(f"buffer_load_dwordx4 v13, s[56:59], s12 offen{fmod} lds")
        A(f"s_mul_i32 s12, s4, {224*896}"); A("s_lshl_b32 s14, s5, 5"); A("s_add_u32 s12, s12, s14")
        for t in range(7):
            A(f"s_mov_b32 m0, {L_W2 + t*1024}")
            if t: A(f"s_add_u32 s12, s12, {32*896}")
            else: A("s_nop 0")
            A(f"buffer_load_dwordx4 v14, s[60:63], s12 offen{fmod} lds")
    A.c("---- gate / up projection: 8 + 8 columns ----")
    A("s_cmp_ge_u32 s5, 28"); A("s_cbranch_scc1 L_noffn1")
    if not ffn: A("s_branch L_noffn1")
    A("s_waitcnt vmcnt(7)")
    gemm(14, "v52", L_W1, 512, 64, AF, 32)
    A(f"s_mov_b32 s14, {f2u(-LOG2E)}")
    for b in range(4): bf16r(f"v{32+b}", f"v{32+b}")
    for b in range(4): A(f"v_mul_f32 v{36+b}, s14, v{32+b}")
    for b in range(4): A(f"v_exp_f32 v{36+b}, v{36+b}")
    for b in range(4): A(f"v_add_f32 v{36+b}, 1.0, v{36+b}")
    for b in range(4): A(f"v_rcp_f32 v{36+b}, v{36+b}")
    for b in range(4): A(f"v_mul_f32 v{36+b}, v{32+b}, v{36+b}")
    for b in range(4): bf16r(f"v{36+b}", f"v{36+b}")
    for b in range(4): A(f"v_mul_f32_dpp v{36+b}, v{32+b}, v{36+b} row_ror:8 {DPP}")
    for b in range(4): A(f"v_mov_b32_dpp v{40+2*b}, v{36+b} quad_perm:[1,0,3,2] {DPP}")
    for b in range(4):
        A(f"v_cvt_pk_bf16_f32 v{40+2*b}, v{36+b}, v{40+2*b}"); A(f"v_mov_b32 v{41+2*b}, s10")
    A("v_lshlrev_b32 v36, 2, v0")
    A("s_lshl_b32 s12, s76, 7"); A(f"s_add_u32 s12, s12, {WS_HG}")
    A("s_mov_b64 exec, 0x55")
    for b in range(4): A(f"buffer_store_dwordx2 v[{40+2*b}:{41+2*b}], v36, s[40:43], s12 offen offset:{32*b} sc1")
    A("s_mov_b64 exec, -1")
    A("L_noffn1:")
    stamp(0)
    A.c("---- down projection partial: 224 rows x 16 columns ----")
    A("s_cmp_ge_u32 s5, 28"); A("s_cbranch_scc1 L_noffn2")
    if not ffn: A("s_branch L_noffn2")
    A("s_mul_i32 s12, s4, 3584"); A(f"s_add_u32 s12, s12, {WS_HG}")
    A("v_add_u32 v40, 3072, v1"); A("v_add_u32 v41, 2048, v1"); A("v_cmp_lt_u32 vcc, 31, v0"); A("v_cndmask_b32 v40, v40, v41, vcc")
    n = poll_begin()
    for i in range(3): A(f"buffer_load_dwordx4 v[{16+4*i}:{19+4*i}], v1, s[40:43], s12 offen offset:{1024*i} sc1")
    A("buffer_load_dwordx4 v[28:31], v40, s[40:43], s12 offen sc1")
    A("s_waitcnt vmcnt(0)")
    for i in range(8): A(f"v_xor_b32 v{32+i}, s10, v{17+2*i}")
    A("v_or3_b32 v32, v32, v33, v34"); A("v_or3_b32 v35, v35, v36, v37"); A("v_or3_b32 v32, v32, v38, v39"); A("v_or_b32 v32, v32, v35")
    A("v_cmp_ne_u32 vcc, 0, v32")
    poll_end(n, 8)
    A("v_bfe_u32 v32, v0, 1, 2"); A("v_lshlrev_b32 v32, 9, v32"); A("v_lshrrev_b32 v33, 3, v0"); A("v_lshlrev_b32 v33, 4, v33")
    A("v_add_u32 v32, v32, v33"); A("v_and_b32 v33, 1, v0"); A("v_lshlrev_b32 v33, 3, v33"); A("v_add_u32 v32, v32, v33")
    A(f"v_add_u32 v32, {L_H}, v32")
    for i in range(3): A(f"ds_write2_b32 v32, v{16+4*i}, v{18+4*i} offset0:{32*i} offset1:{32*i+1}")
    A("s_mov_b32 exec_hi, 0")
    A("ds_write2_b32 v32, v28, v30 offset0:96 offset1:97")
    A("s_mov_b64 exec, -1")
    A("v_lshlrev_b32 v33, 9, v48"); A("v_lshlrev_b32 v34, 4, v4"); A("v_add_u32 v33, v33, v34")
    A("s_waitcnt lgkmcnt(0)")
    for t in range(7): A(f"ds_read_b128 v[{AF+4*t}:{AF+4*t+3}], v33 offset:{L_H + 64*t}")
    gemm(7, "v51", L_W2, 1024, 128, AF, 32)
    A("v_lshlrev_b32 v44, 3, v0")
    A("s_mul_i32 s12, s4, 448"); A("s_lshl_b32 s14, s5, 4"); A("s_add_u32 s12, s12, s14"); A("s_lshl_b32 s12, s12, 3"); A(f"s_add_u32 s12, s12, {WS_FG}")
    for b in range(4):
        A(f"v_mov_b32 v{36+2*b}, v{32+b}"); A(f"v_mov_b32 v{37+2*b}, s10")
    A("s_mov_b64 exec, 0xffff")
    for b in range(4):
        A(f"buffer_store_dwordx2 v[{36+2*b}:{37+2*b}], v44, s[40:43], s12 offen sc1")
        if b < 3: A(f"s_add_u32 s12, s12, {8*448*8}")
    A("s_mov_b64 exec, -1")
    A("L_noffn2:")
    stamp(0)
    A.c("---- every workgroup of my batch row has cleared its mailboxes (its ready tag is out) ----")
    A("v_lshlrev_b32 v32, 2, v0")
    A("s_lshl_b32 s12, s6, 8"); A(f"s_add_u32 s12, s12, {WS_RDY}")
    n = poll_begin()
    A("buffer_load_dword v33, v32, s[40:43], s12 offen sc1")
    A("s_waitcnt vmcnt(0)")
    A("v_cmp_ne_u32 vcc, s10, v33")
    poll_end(n, 8)
    A.c("---- gate value g for my 8 output columns ----")
    srd(64, 34, 3584)
    A("v_and_b32 v34, 1, v0")
    A("v_lshlrev_b32 v60, 3, v34")
    A("s_mul_i32 s77, s6, 896"); A("s_lshl_b32 s14, s9, 4"); A("s_add_u32 s77, s77, s14")
    A("s_cmp_ge_u32 s9, 56"); A("s_cbranch_scc1 L_nog")
    if not ffn: A("s_branch L_nog")
    A("v_bfe_u32 v32, v0, 1, 3"); A("v_mul_u32_u24 v32, 3584, v32"); A("v_lshlrev_b32 v33, 5, v34"); A("v_add_u32 v32, v32, v33")
    A(f"s_mul_i32 s12, s6, {8*448*8}"); A("s_lshl_b32 s14, s9, 6"); A("s_add_u32 s12, s12, s14"); A(f"s_add_u32 s12, s12, {WS_FG}")
    A("buffer_load_dwordx2 v[62:63], v60, s[44:47], s77 offen")
    n = poll_begin()
    A("buffer_load_dwordx4 v[16:19], v32, s[40:43], s12 offen sc1")
    A("buffer_load_dwordx4 v[20:23], v32, s[40:43], s12 offen offset:16 sc1")
    A("s_waitcnt vmcnt(0)")
    for i in range(4): A(f"v_xor_b32 v{24+i}, s10, v{17+2*i}")
    A("v_or3_b32 v24, v24, v25, v26"); A("v_or_b32 v24, v24, v27")
    A("v_cmp_ne_u32 vcc, 0, v24")
    poll_end(n, 8)
    for perm in ("quad_perm:[2,3,0,1]", "row_ror:4", "row_ror:8"):
        for i in range(4): A(f"v_add_f32_dpp v{16+2*i}, v{16+2*i}, v{16+2*i} {perm} {DPP}")
    A(f"s_mov_b32 s14, {f2u(-LOG2E)}")
    G = 56
    for i in range(4): bf16r(f"v{16+2*i}", f"v{16+2*i}")
    for i in range(4): A(f"v_mul_f32 v{G+i}, s14, v{16+2*i}")
    for i in range(4): A(f"v_exp_f32 v{G+i}, v{G+i}")
    for i in range(4): A(f"v_add_f32 v{G+i}, 1.0, v{G+i}")
    for i in range(4): A(f"v_rcp_f32 v{G+i}, v{G+i}")
    for i in range(4): A(f"v_mul_f32 v{G+i}, v{16+2*i}, v{G+i}")
    for i in range(4): bf16r(f"v{G+i}", f"v{G+i}")
    A("v_lshlrev_b32 v52, 16, v62"); A("v_and_b32 v53, 0xffff0000, v62"); A("v_lshlrev_b32 v54, 16, v63"); A("v_and_b32 v55, 0xffff0000, v63")
    A("L_nog:")
    A.c("---- softmax statistics of the whole row: per-wave factors exp(m_w - M) / L ----")
    A("s_lshl_b32 s12, s8, 10"); A(f"s_add_u32 s12, s12, {WS_ML}")
    n = poll_begin()
    A("buffer_load_dwordx4 v[16:19], v1, s[40:43], s12 offen sc1")
    A("s_waitcnt vmcnt(0)")
    A("v_xor_b32 v20, s10, v17"); A("v_xor_b32 v21, s10, v19"); A("v_or_b32 v20, v20, v21")
    A("v_cmp_ne_u32 vcc, 0, v20")
    poll_end(n, 8)
    A("v_mov_b32 v20, v16")
    for perm in ("quad_perm:[2,3,0,1]", "row_ror:4", "row_ror:8"): A(f"v_max_f32_dpp v20, v20, v20 {perm} {DPP}")
    xrow("v_max_f32", ["v20"], ["v21"])
    A(f"s_mov_b32 s14, {f2u(LOG2E/16)}")
    A("v_sub_f32 v20, v16, v20"); A("v_mul_f32 v20, s14, v20"); A("v_exp_f32 v20, v20")
    A("v_mul_f32 v21, v20, v18")
    for perm in ("quad_perm:[2,3,0,1]", "row_ror:4", "row_ror:8"): A(f"v_add_f32_dpp v21, v21, v21 {perm} {DPP}")
    xrow("v_add_f32", ["v21"], ["v22"])
    A("v_rcp_f32 v21, v21"); A("v_mul_f32 v20, v20, v21")
    A("v_and_b32 v22, 1, v0"); A("v_lshlrev_b32 v22, 7, v22"); A("v_lshrrev_b32 v23, 1, v0"); A("v_lshlrev_b32 v23, 2, v23"); A("v_add_u32 v22, v22, v23")
    A(f"ds_write_b32 v22, v20 offset:{L_C}")
    A("s_lshl_b32 s12, s7, 4"); A("v_mov_b32 v22, s12")
    A("s_waitcnt lgkmcnt(0)")
    A(f"ds_read_b128 v[24:27], v22 offset:{L_C}"); A(f"ds_read_b128 v[28:31], v22 offset:{L_C+128}")
    A("v_lshrrev_b32 v22, 3, v0"); A("v_lshlrev_b32 v22, 11, v22"); A("v_and_b32 v23, 7, v0"); A("v_lshlrev_b32 v23, 4, v23"); A("v_add_u32 v22, v22, v23")
    A("s_lshl_b32 s12, s8, 14"); A("s_lshl_b32 s14, s7, 8"); A("s_add_u32 s12, s12, s14"); A(f"s_add_u32 s12, s12, {WS_M1}")
    A("s_waitcnt lgkmcnt(0)")
    stamp(0)
    A("s_barrier")
    A.c("---- combine the four waves, publish the normalised partial ----")
    for h in range(2):
        for w in range(4):
            r = 64 + 16 * h + 4 * w
            A(f"ds_read_b128 v[{r}:{r+3}], v1 offset:{L_ACC + w*2048 + h*1024}")
    for h in range(2):
        A(f"s_waitcnt lgkmcnt({4 if h == 0 else 0})")
        r0 = 64 + 16 * h
        for e in range(4): A(f"v_mul_f32 v{r0+e}, v{24+4*h}, v{r0+e}")
        for w in range(1, 4):
            for e in range(4): A(f"v_fmac_f32 v{r0+e}, v{24+4*h+w}, v{r0+4*w+e}")
        for e in range(4): A(f"v_min_u32 v{r0+e}, -2, v{r0+e}")
        A(f"buffer_store_dwordx4 v[{r0}:{r0+3}], v22, s[40:43], s12 offen offset:{128*h} sc1")
    stamp(0)
    A("s_barrier")
    A("s_cmp_ge_u32 s9, 56"); A("s_cbranch_scc1 L_fin")
    A.c("---- hand-off 2: sum the 64 projected partials of my 8 columns, gate, residual ----")
    n = poll_begin()
    A("buffer_load_dwordx4 v[16:19], v1, s[40:43], s72 offen sc1")
    A("buffer_load_dwordx4 v[20:23], v1, s[40:43], s72 offen offset:1024 sc1")
    A("s_waitcnt vmcnt(0)")
    A("v_max3_u32 v24, v16, v17, v18"); A("v_max3_u32 v25, v19, v20, v21"); A("v_max3_u32 v24, v24, v22, v23"); A("v_max_u32 v24, v24, v25")
    A("v_cmp_eq_u32 vcc, -1, v24")
    poll_end(n, sl2)
    for e in range(4): A(f"v_add_f32 v{16+e}, v{16+e}, v{20+e}")
    for perm in ("quad_perm:[2,3,0,1]", "row_ror:4", "row_ror:8"):
        for e in range(4): A(f"v_add_f32_dpp v{16+e}, v{16+e}, v{16+e} {perm} {DPP}")
    xrow("v_add_f32", [f"v{16+e}" for e in range(4)], [f"v{20+e}" for e in range(4)])
    for e in range(4): bf16r(f"v{16+e}", f"v{16+e}")
    for e in range(4): A(f"v_mul_f32 v{16+e}, v{16+e}, v{G+e}")
    for e in range(4): bf16r(f"v{16+e}", f"v{16+e}")
    for e in range(4): A(f"v_add_f32 v{16+e}, v{52+e}, v{16+e}")
    A("v_cvt_pk_bf16_f32 v16, v16, v17"); A("v_cvt_pk_bf16_f32 v17, v18, v19")
    A("s_mov_b64 exec, 3")
    A("buffer_store_dwordx2 v[16:17], v60, s[64:67], s77 offen")
    A("s_cmp_lg_u32 s2, 0"); A("s_cbranch_scc1 L_fin")
    A("s_mov_b64 exec, 1")
    A("v_mov_b32 v18, 0"); A("v_mov_b32 v19, s10")
    A("buffer_store_dword v19, v18, s[40:43], 0 offen sc1")
    A("L_fin:")
    stamp(0)
    dump_stamps(nst[0])
    A("L_end:"); A("s_endpgm")
    A('.section .rodata,"a"'); A(".p2align 6"); A(f".amdhsa_kernel {KNAME}")
    A("  .amdhsa_next_free_vgpr 256"); A("  .amdhsa_next_free_sgpr 102"); A("  .amdhsa_accum_offset 256")
    A("  .amdhsa_group_segment_fixed_size 0"); A("  .amdhsa_kernarg_size 96"); A("  .amdhsa_user_sgpr_count 2")
    A("  .amdhsa_user_sgpr_kernarg_segment_ptr 1"); A("  .amdhsa_system_sgpr_workgroup_id_x 1"); A(".end_amdhsa_kernel")
    text, npad = A.text()
    lines = text.split("\n")
    return HEADER + "\n".join(lines)

if __name__ == "__main__":
    import json
    kw = json.loads(sys.argv[2]) if len(sys.argv) > 2 else {}
    open(sys.argv[1], "w").write(gen(**kw))
```

```python
import sys, struct
from asmlib import Asm
KNAME = "recurrent_scan__gqa_block_cached__glu_gated_swiglu__decode_kernel"

WS_PG = 0x1000
WS_FG = 0x30000
WS_ML = 0xA0000
WS_RDY = 0xB0000
WS_M1 = 0x100000
WS_M2 = 0x180000
WS_ST = 0x200000
WS_SIZE = 0x400000
PGROW = 3840 * 8
L_XN = 0
L_PP = 0
L_Q = 4096
L_NONCE = 5120
L_C = 5184
L_H = 5696
L_T = 8192
L_ACC = 66560
L_TOTAL = 72704
NWAVES = 4
NS = 3
SPIN = 40000
LOG2E = 1.4426950408889634
NU = 48
HNAMES = "[start lnDone projpub qgot Djob late g ml m1pub fin]"
SNAMES = "[start projpub ringfull qready kdone smdone vdone m1got m2pub]"

def f2u(x): return struct.unpack("<I", struct.pack("<f", x))[0]

HEADER = """; Kernarg layout (96 bytes): 0 A_x, 8 A_k_cache, 16 A_v_cache, 24 A_wq, 32 A_wo, 40 B_x (unused by the reference),
"""

def gen(D0=11, R=80, CU=2, kmod=" nt", vmod=" nt", wmod="", womod="", diag=False, sl1=2, sl2=1, slq=2,
        njA=120, nnA=141, njB=118, nnB=138, DW=None, DPRE=None, nokv=False, notile=False, nowo=False, slm=16, noclear=False, QAT=48, LAT=14, NPI=4):
    A = Asm()
    nst = [0]
    if DW is None: DW = D0
    if DPRE is None: DPRE = D0
    allq = [njA, nnA, 1024 - 5*njA - 2*nnA, njB, nnB, 1024 - 4*njB - 3*nnB]
    nmin = (min(allq) - (NS - 1)) // NS
    assert max(allq) <= NU * NS, allq
    def stamp():
        if diag:
            k = nst[0]; nst[0] += 1
            assert k < 10
            A(f"s_memrealtime s[{82+2*k}:{83+2*k}]")
    def dump_stamps(n):
        if not diag: return
        A("s_waitcnt vmcnt(0) lgkmcnt(0)")
        A(f"s_mul_i32 s12, s2, {NWAVES}"); A("s_add_u32 s12, s12, s3"); A("s_lshl_b32 s12, s12, 6")
        A(f"s_add_u32 s12, s12, {WS_ST}")
        A("s_mov_b64 exec, 1")
        A("v_mov_b32 v4, 0")
        for q in range(0, 10, 2):
            for e in range(2):
                k = q + e
                A(f"v_mov_b32 v{6+e}, s{82+2*k}" if k < n else f"v_mov_b32 v{6+e}, 0")
            A(f"buffer_store_dwordx2 v[6:7], v4, s[40:43], s12 offen offset:{q*4}")
            A("s_nop 1")
    def srd(d, p, size):
        A(f"s_mov_b32 s{d}, s{p}"); A(f"s_mov_b32 s{d+1}, s{p+1}")
        A(f"s_mov_b32 s{d+2}, {size}"); A(f"s_mov_b32 s{d+3}, 0x20000")
    lab = [0]
    def poll_begin():
        lab[0] += 1
        A(f"s_mov_b32 s11, {SPIN}")
        A(f"L_poll{lab[0]}:")
        return lab[0]
    def poll_end(n, sleep):
        A(f"s_cbranch_vccz L_done{n}")
        A("s_sub_u32 s11, s11, 1")
        A(f"s_cbranch_scc1 L_done{n}")
        if sleep: A(f"s_sleep {sleep}")
        A(f"s_branch L_poll{n}")
        A(f"L_done{n}:")
    def poll_end_masked(n, sleep):
        A(f"s_cbranch_vccz L_done{n}")
        A("s_mov_b64 exec, vcc")
        A("s_sub_u32 s11, s11, 1")
        A(f"s_cbranch_scc1 L_done{n}")
        if sleep: A(f"s_sleep {sleep}")
        A(f"s_branch L_poll{n}")
        A(f"L_done{n}:")
        A("s_mov_b64 exec, -1")
    def lds_wait(name, vaddr, off, tmp, sleep=2):
        A(f"{name}:")
        A(f"ds_read_b32 {tmp}, {vaddr} offset:{off}")
        A("s_waitcnt lgkmcnt(0)")
        A(f"v_cmp_eq_u32 vcc, 0, {tmp}")
        A(f"s_cbranch_vccz {name}_ok")
        A(f"s_sleep {sleep}")
        A(f"s_branch {name}")
        A(f"{name}_ok:")
    DPP = "row_mask:0xf bank_mask:0xf"
    def bf16r(dst, src):
        A(f"v_cvt_pk_bf16_f32 {dst}, {src}, {src}")
        A(f"v_and_b32 {dst}, 0xffff0000, {dst}")
    def xrow(op, regs, tmps):
        for sw in ("v_permlane16_swap_b32", "v_permlane32_swap_b32"):
            for r, t in zip(regs, tmps): A(f"v_mov_b32 {t}, {r}")
            for r, t in zip(regs, tmps): A(f"{sw} {r}, {t}")
            for r, t in zip(regs, tmps): A(f"{op} {r}, {r}, {t}")
    def rowmasks():
        A("s_mov_b32 s74, 0xffff0000"); A("s_mov_b32 s75, 0")
        A("s_mov_b32 s76, 0"); A("s_mov_b32 s77, 0xffff")
        A("s_mov_b32 s78, 0"); A("s_mov_b32 s79, 0xffff0000")
    def pick_row(dst, d):
        A(f"v_cndmask_b32 {dst}, v{d}, v{d+1}, s[74:75]")
        A(f"v_cndmask_b32 {dst}, {dst}, v{d+2}, s[76:77]")
        A(f"v_cndmask_b32 {dst}, {dst}, v{d+3}, s[78:79]")
    AF = 100; BF = AF + 56
    def proj_setup(ct):
        rowmasks()
        A("v_and_b32 v8, 3, v0"); A("v_lshlrev_b32 v9, 10, v8"); A("v_lshlrev_b32 v10, 4, v4"); A("v_add_u32 v9, v9, v10")
        A("v_bfe_u32 v10, v0, 2, 2"); A("v_lshlrev_b32 v11, 3, v4"); A("v_add_u32 v10, v10, v11"); A("v_lshlrev_b32 v10, 7, v10")
        A("v_lshlrev_b32 v11, 3, v8"); A("v_add_u32 v10, v10, v11"); A(f"s_lshl_b32 s12, {ct}, 5"); A("v_add_u32 v10, s12, v10")
        A(f"v_mov_b32 v12, {L_NONCE}")
        A(f"v_mul_u32_u24 v11, {PGROW}, v4"); A("v_lshlrev_b32 v13, 2, v5"); A("v_add_u32 v11, v11, v13")
        A("s_cmp_eq_u32 s14, 1"); A("s_cselect_b32 s72, 0, 4096"); A("s_cmp_eq_u32 s14, 3"); A(f"s_cselect_b32 s72, {4096+1792}, s72")
        A("s_lshl_b32 s12, s15, 6"); A("s_add_u32 s72, s72, s12"); A(f"s_lshl_b32 s12, {ct}, 4"); A("s_add_u32 s72, s72, s12")
        A("s_lshl_b32 s72, s72, 2"); A(f"s_add_u32 s72, s72, {WS_PG}")
    def proj_run(hook=None):
        for t in range(14): A(f"ds_read_b128 v[{AF+4*t}:{AF+4*t+3}], v9 offset:{L_XN + 64*t}")
        A("ds_read_b32 v13, v12")
        if hook: hook(0)
        A("s_waitcnt lgkmcnt(1)")
        for tt in range(14):
            if tt == 7:
                if hook: hook(1)
                A("s_waitcnt lgkmcnt(1)")
            A(f"ds_read_b64_tr_b16 v[{BF+4*tt}:{BF+4*tt+1}], v10 offset:{L_T + 4096*tt}")
            A(f"ds_read_b64_tr_b16 v[{BF+4*tt+2}:{BF+4*tt+3}], v10 offset:{L_T + 4096*tt + 512}")
        for tt in range(14):
            if tt == 0:
                if hook: hook(2)
                A("s_waitcnt lgkmcnt(14)")
            if tt == 7:
                if hook: hook(3)
                A("s_waitcnt lgkmcnt(0)")
            d = 28 + 4 * (tt % 2)
            A(f"v_mfma_f32_16x16x32_bf16 v[{d}:{d+3}], v[{AF+4*tt}:{AF+4*tt+3}], v[{BF+4*tt}:{BF+4*tt+3}], " + ("0" if tt < 2 else f"v[{d}:{d+3}]"))
        for r in range(4): A(f"v_add_f32 v{28+r}, v{28+r}, v{32+r}")
        pick_row("v32", 28)
        A(f"v_mov_b32_dpp v33, v32 quad_perm:[1,0,3,2] {DPP}")
        A("v_cvt_pk_bf16_f32 v12, v32, v33")
        A("s_mov_b32 exec_lo, 0x55555555"); A("s_mov_b32 exec_hi, 0x55555555")
        A("buffer_store_dwordx2 v[12:13], v11, s[40:43], s72 offen sc1")
        A("s_mov_b64 exec, -1")

    A(f"; @launch grid=(256,1,1) block=(256,1,1) lds={L_TOTAL}")
    A('.amdgcn_target "amdgcn-amd-amdhsa--gfx950"')
    A(".text"); A(f".globl {KNAME}"); A(".p2align 8"); A(f".type {KNAME},@function"); A(f"{KNAME}:")
    A("s_cmp_ge_u32 s2, 256"); A("s_cbranch_scc1 L_end")
    A("s_load_dwordx16 s[16:31], s[0:1], 0")
    A("s_load_dwordx8 s[32:39], s[0:1], 64")
    stamp()
    A("v_lshrrev_b32 v1, 6, v0"); A("v_and_b32 v0, 63, v0")
    A("v_readfirstlane_b32 s3, v1")
    A("s_and_b32 s4, s2, 7")
    A("s_lshr_b32 s5, s2, 3")
    A("s_lshr_b32 s6, s5, 3")
    A("s_and_b32 s7, s5, 7")
    A("s_lshl_b32 s8, s6, 3"); A("s_add_u32 s8, s8, s4")
    A("s_lshl_b32 s9, s4, 3"); A("s_add_u32 s9, s9, s7")
    A("v_lshrrev_b32 v4, 4, v0")
    A("v_and_b32 v5, 15, v0")
    A("s_sub_u32 s12, s7, 2"); A("s_lshl_b32 s12, s12, 5"); A("s_add_u32 s12, s12, s8")
    A("s_mov_b32 s14, 0"); A("s_mov_b32 s15, 0")
    A("s_sub_u32 s13, s12, 56"); A("s_cmp_lt_u32 s12, 84"); A("s_cselect_b32 s14, 4, s14"); A("s_cselect_b32 s15, s13, s15")
    A("s_sub_u32 s13, s12, 28"); A("s_cmp_lt_u32 s12, 56"); A("s_cselect_b32 s14, 3, s14"); A("s_cselect_b32 s15, s13, s15")
    A("s_cmp_lt_u32 s12, 28"); A("s_cselect_b32 s14, 2, s14"); A("s_cselect_b32 s15, s12, s15")
    A("s_lshl_b32 s13, s8, 1"); A("s_add_u32 s13, s13, s7")
    A("s_cmp_lt_u32 s7, 2"); A("s_cselect_b32 s14, 1, s14"); A("s_cselect_b32 s15, s13, s15")
    A("s_cmp_eq_u32 s3, 0"); A("s_cbranch_scc1 L_helper")

    A.c("================ stream waves ================")
    A("s_sub_u32 s13, s3, 1")
    A("s_cmp_lt_u32 s8, 20")
    A(f"s_cselect_b32 s64, 5, 4"); A(f"s_mov_b32 s66, {njB}"); A(f"s_cselect_b32 s66, {njA}, s66"); A(f"s_mov_b32 s67, {nnB}"); A(f"s_cselect_b32 s67, {nnA}, s67")
    A("s_min_u32 s12, s7, s64"); A("s_mul_i32 s65, s12, s66"); A("s_sub_u32 s12, s7, s12"); A("s_mul_i32 s12, s12, s67"); A("s_add_u32 s65, s65, s12")
    A("s_cmp_lt_u32 s7, s64"); A("s_cselect_b32 s66, s66, s67")
    A("s_sub_u32 s12, 1024, s65"); A("s_cmp_eq_u32 s7, 7"); A("s_cselect_b32 s66, s12, s66")
    A("s_sub_u32 s64, s66, s13")
    A("s_lshl_b32 s12, s8, 21"); A("s_lshl_b32 s65, s65, 11"); A("s_add_u32 s65, s12, s65")
    A("s_lshl_b32 s66, s66, 11")
    if nokv: A("s_mov_b32 s66, 0")
    A("v_lshlrev_b32 v1, 6, v4"); A("v_bfe_u32 v6, v0, 2, 2"); A("v_lshlrev_b32 v6, 9, v6")
    A("v_and_b32 v7, 3, v0"); A("v_lshlrev_b32 v2, 4, v7"); A("v_add3_u32 v1, v1, v6, v2")
    A("s_lshl_b32 s68, s13, 11"); A("s_mov_b32 s69, s68")
    A("s_mov_b32 s46, s66"); A("s_mov_b32 s47, 0x20000"); A("s_mov_b32 s50, s66"); A("s_mov_b32 s51, 0x20000")
    A("s_waitcnt lgkmcnt(0)")
    A("s_add_u32 s44, s18, s65"); A("s_addc_u32 s45, s19, 0")
    A("s_add_u32 s48, s20, s65"); A("s_addc_u32 s49, s21, 0")
    srd(40, 38, WS_SIZE)
    quads = [f"a[{4*i}:{4*i+3}]" for i in range(64)] + [f"v[{96+4*i}:{99+4*i}]" for i in range(39, -1, -1)]
    free = list(quads)
    assert R <= len(free)
    NW = 24
    items = [("k", i) for i in range(2 * NU)] + [("v", i) for i in range(2 * NU)] + [("w", i) for i in range(NW)]
    pos = {it: n for n, it in enumerate(items)}
    reg = {}
    issued = [0]
    def issue():
        it = items[issued[0]]
        r = free.pop(0); reg[it] = r
        t, i = it
        if t == "k":
            if i % 2 == 0 and i > 0: A(f"s_add_u32 s68, s68, {2048*NS}")
            A(f"buffer_load_dwordx4 {r}, v1, s[44:47], s68 offen offset:{(i%2)*256}{kmod}")
        elif t == "v":
            if i % 2 == 0 and i > 0: A(f"s_add_u32 s69, s69, {2048*NS}")
            A(f"buffer_load_dwordx4 {r}, v2, s[48:51], s69 offen offset:{(i%2)*256}{vmod}")
        else:
            tt, bl = i // 3, i % 3
            if bl == 0 and tt > 0: A("s_add_u32 s70, s70, 896")
            if bl < 2: A(f"buffer_load_dwordx4 {r}, v3, s[52:55], s70 offen offset:{128*bl}{womod}")
            else: A(f"buffer_load_dwordx4 {r}, v3, s[56:59], s70 offen offset:768{womod}")
        issued[0] += 1
    def release(it): free.append(reg[it])
    def wait_for(it):
        n = issued[0] - 1 - pos[it]
        assert n >= 0
        A(f"s_waitcnt vmcnt({min(n,63)})")
    lnd = [-1]
    def paced_issue():
        if issued[0] < len(items) and free:
            d = DW if items[issued[0]][0] == "w" else D0
            A(f"s_waitcnt vmcnt({d-1})"); lnd[0] = max(lnd[0], issued[0] - d); issue(); return True
        return False
    def landed(): return lnd[0]

    A.c("---- projection job (q / gate / up): the weight tile goes out first ----")
    A("s_sub_u32 s12, s14, 1"); A("s_cmp_lt_u32 s12, 3"); A("s_cbranch_scc0 L_notile")
    A("s_cmp_eq_u32 s14, 1")
    A("s_cselect_b32 s52, s22, s28"); A("s_cselect_b32 s53, s23, s29")
    A(f"s_mov_b32 s54, {448*3584}"); A(f"s_cselect_b32 s54, {448*8192}, s54"); A("s_mov_b32 s71, 3584"); A("s_cselect_b32 s71, 8192, s71")
    A("s_cmp_eq_u32 s14, 3")
    A("s_cselect_b32 s52, s30, s52"); A("s_cselect_b32 s53, s31, s53")
    A("s_mov_b32 s55, 0x20000")
    if notile: A("s_mov_b32 s54, 0")
    A("v_lshrrev_b32 v6, 3, v0"); A("v_mul_lo_u32 v6, v6, s71"); A("v_and_b32 v7, 7, v0"); A("v_lshlrev_b32 v7, 4, v7"); A("v_add_u32 v6, v6, v7")
    A("s_lshl_b32 s12, s13, 3"); A("s_mul_i32 s12, s12, s71"); A("s_lshl_b32 s66, s15, 7"); A("s_add_u32 s12, s12, s66")
    A("s_mul_i32 s66, s71, 24"); A("s_lshl_b32 s67, s13, 10")
    for t in range(19):
        A(f"s_add_u32 m0, s67, {L_T + t*3072}")
        if t: A("s_add_u32 s12, s12, s66")
        else: A("s_nop 0")
        A(f"buffer_load_dwordx4 v6, s[52:55], s12 offen{wmod} lds")
    A("L_notile:")
    for n in range(DPRE): issue()
    A("s_barrier")
    A("v_lshlrev_b32 v2, 9, v4"); A("v_lshlrev_b32 v6, 4, v5"); A("v_add_u32 v2, v2, v6")
    A("v_mul_u32_u24 v3, 7168, v4"); A("v_and_b32 v6, 7, v0"); A("v_lshlrev_b32 v6, 4, v6"); A("v_add_u32 v3, v3, v6")
    A("v_bfe_u32 v6, v0, 3, 1"); A(f"v_mul_u32_u24 v6, {256*896}, v6"); A("v_add_u32 v3, v3, v6")
    A("s_lshl_b32 s70, s4, 9"); A("s_lshl_b32 s12, s7, 5"); A("s_add_u32 s70, s70, s12"); A("s_mul_i32 s70, s70, 896")
    A("s_lshl_b32 s12, s13, 8"); A("s_add_u32 s70, s70, s12")
    A("v_and_b32 v6, 1, v0"); A("v_mov_b32 v7, 0xffff"); A("v_mov_b32 v8, 0xffff0000")
    A("v_cmp_eq_u32 vcc, 1, v6"); A("v_cndmask_b32 v7, v7, v8, vcc")
    A("v_bfe_u32 v6, v0, 1, 2")
    for r in range(4):
        A(f"v_cmp_eq_u32 vcc, {r}, v6"); A(f"v_cndmask_b32 v{16+r}, 0, v7, vcc")
    for r in range(8): A(f"v_mov_b32 v{20+r}, 0")
    A("s_sub_u32 s12, s14, 1"); A("s_cmp_lt_u32 s12, 3"); A("s_cbranch_scc0 L_noproj")
    proj_setup("s13")
    A(f"s_waitcnt vmcnt({DPRE})")
    save = (issued[0], list(free), lnd[0])
    for n in range(D0 - DPRE): issue()
    A("s_barrier"); proj_run(lambda k: paced_issue() if k < NPI else None)
    A("s_branch L_projdone")
    A("L_noproj:")
    issued[0] = save[0]; free[:] = save[1]; lnd[0] = save[2]
    for n in range(D0 - DPRE): issue()
    for n in range(NPI): paced_issue()
    A("L_projdone:")
    stamp()
    srd(52, 24, 0 if nowo else 4096 * 896)
    A("s_mov_b32 s56, s24"); A("s_mov_b32 s57, s25"); A("s_cmp_eq_u32 s13, 0"); A(f"s_cselect_b32 s58, {0 if nowo else 4096*896}, 0"); A("s_mov_b32 s59, 0x20000")
    A("v_bfe_u32 v6, v0, 3, 1"); A("v_lshlrev_b32 v6, 9, v6"); A("v_lshlrev_b32 v7, 6, v4"); A("v_add_u32 v6, v6, v7")
    A("v_and_b32 v7, 3, v0"); A("v_lshlrev_b32 v7, 4, v7"); A("v_add_u32 v6, v6, v7")
    A(f"v_mov_b32 v7, {L_NONCE}")
    A("v_mov_b32 v8, 1")
    while issued[0] < R:
        paced_issue()
        if issued[0] == QAT: A("ds_write_b32 v7, v8 offset:8")
    stamp()
    M = 92
    lds_wait("L_qwait", "v7", 4, f"v{M}", 1)
    A(f"v_mov_b32 v{M}, 0xff800000")
    A(f"ds_read_b128 v[8:11], v6 offset:{L_Q}"); A(f"ds_read_b128 v[12:15], v6 offset:{L_Q+256}")
    A(f"ds_read_b32 v{M+1}, v7")
    A("s_waitcnt lgkmcnt(0)")
    stamp()
    SC = 44
    def qk_reduce(u):
        d = 28 + 4 * (u % 2)
        A(f"v_mov_b32_dpp v4, v{d} quad_perm:[0,0,0,0] {DPP}")
        A(f"v_mov_b32_dpp v5, v{d+2} quad_perm:[2,2,2,2] {DPP}")
        if u >= nmin:
            A(f"s_cmp_gt_u32 s64, {NS*u}"); A("s_cselect_b32 s12, 0, 0xff800000")
        else: A("s_nop 0")
        A(f"v_add_f32_dpp v4, v{d+1}, v4 quad_perm:[1,1,1,1] {DPP}")
        A(f"v_add_f32_dpp v5, v{d+3}, v5 quad_perm:[3,3,3,3] {DPP}")
        A(f"v_add_f32 v{SC+u}, v4, v5")
        if u >= nmin: A(f"v_add_f32 v{SC+u}, s12, v{SC+u}")
        if u % 2 == 1: A(f"v_max3_f32 v{M}, v{M}, v{SC+u-1}, v{SC+u}")
        elif u == NU - 1: A(f"v_max_f32 v{M}, v{M}, v{SC+u}")
    u = 0
    while u < NU:
        k1 = ("k", 2*u+1)
        while pos[k1] > landed() and paced_issue(): pass
        burst = 0
        while u < NU and burst < CU and (pos[("k", 2*u+1)] <= landed() or burst == 0):
            k0, k1 = ("k", 2*u), ("k", 2*u+1)
            if pos[k1] > landed(): wait_for(k1)
            d = 28 + 4 * (u % 2)
            A(f"v_mfma_f32_16x16x32_bf16 v[{d}:{d+3}], {reg[k0]}, v[8:11], 0")
            A(f"v_mfma_f32_16x16x32_bf16 v[{d}:{d+3}], {reg[k1]}, v[12:15], v[{d}:{d+3}]")
            release(k0); release(k1)
            if u > 0: qk_reduce(u - 1)
            u += 1; burst += 1
        if u < NU and pos[("k", 2*u+1)] <= landed(): paced_issue()
    qk_reduce(NU - 1)
    stamp()
    A.c("---- softmax numerators over this wave's keys ----")
    xrow("v_max_f32", [f"v{M}"], ["v4"])
    bf16r(f"v{M}", f"v{M}")
    A(f"s_mov_b32 s12, {f2u(LOG2E/16)}")
    A(f"v_mov_b32 v{M+2}, 0"); A(f"v_mov_b32 v{M+3}, 0")
    for u in range(0, NU, 2):
        a, b_ = SC + u, SC + u + 1
        A(f"v_cvt_pk_bf16_f32 v4, v{a}, v{b_}")
        A(f"v_lshlrev_b32 v{a}, 16, v4"); A(f"v_and_b32 v{b_}, 0xffff0000, v4")
        for r in (a, b_): A(f"v_sub_f32 v{r}, v{r}, v{M}")
        for r in (a, b_): A(f"v_mul_f32 v{r}, s12, v{r}")
        for r in (a, b_): A(f"v_exp_f32 v{r}, v{r}")
        A(f"v_add_f32 v{M+2}, v{M+2}, v{a}"); A(f"v_add_f32 v{M+3}, v{M+3}, v{b_}")
        for r in (a, b_): A(f"v_cvt_pk_bf16_f32 v{r}, v{r}, v{r}")
        if u % 8 == 6: paced_issue()
    A(f"v_add_f32 v{M+2}, v{M+2}, v{M+3}")
    xrow("v_add_f32", [f"v{M+2}"], ["v4"])
    A(f"v_mov_b32 v{M+3}, v{M+1}")
    A("v_lshlrev_b32 v4, 1, v0")
    A("s_lshl_b32 s12, s8, 10"); A("s_lshl_b32 s66, s7, 2"); A("s_add_u32 s66, s66, s13"); A("s_lshl_b32 s66, s66, 5")
    A("s_add_u32 s12, s12, s66"); A(f"s_add_u32 s12, s12, {WS_ML}")
    A("s_mov_b64 exec, 0x101")
    A(f"buffer_store_dwordx4 v[{M}:{M+3}], v4, s[40:43], s12 offen sc1")
    A("s_mov_b64 exec, -1")
    stamp()
    A.c("---- P.V ----")
    since = 0
    for u in range(NU):
        v0_, v1_ = ("v", 2*u), ("v", 2*u+1)
        a = 36 + 4 * (u % 2)
        for r in range(4): A(f"v_and_b32 v{a+r}, v{16+r}, v{SC+u}")
        if pos[v1_] <= landed():
            since += 1
            if since >= CU: paced_issue(); since = 0
        while pos[v1_] > landed() and paced_issue(): pass
        if pos[v1_] > landed(): wait_for(v1_)
        A(f"v_mfma_f32_16x16x32_bf16 v[20:23], v[{a}:{a+3}], {reg[v0_]}, v[20:23]")
        A(f"v_mfma_f32_16x16x32_bf16 v[24:27], v[{a}:{a+3}], {reg[v1_]}, v[24:27]")
        release(v0_); release(v1_)
        if u == NU - LAT:
            A(f"v_mov_b32 v8, {L_NONCE}"); A("v_mov_b32 v9, 1"); A("ds_write_b32 v8, v9 offset:12")
        if u == NU - 10:
            A("v_lshrrev_b32 v4, 5, v0"); A("v_lshlrev_b32 v4, 10, v4")
            A("v_and_b32 v5, 15, v0"); A("v_lshlrev_b32 v6, 5, v5"); A("v_add_u32 v4, v4, v6")
            A("v_bfe_u32 v6, v0, 4, 1"); A("v_lshlrev_b32 v6, 4, v6"); A("v_add_u32 v4, v4, v6")
            A("s_lshl_b32 s12, s13, 11"); A(f"s_add_u32 s12, s12, {L_ACC}"); A("v_add_u32 v4, s12, v4")
            A("v_and_b32 v5, 7, v0"); A("v_lshlrev_b32 v5, 8, v5"); A("v_bfe_u32 v6, v0, 3, 1"); A("v_lshlrev_b32 v6, 7, v6")
            A("v_add_u32 v5, v5, v6"); A("v_lshrrev_b32 v6, 4, v0"); A("v_lshlrev_b32 v6, 5, v6"); A("v_add_u32 v5, v5, v6")
            A("s_lshl_b32 s71, s8, 3"); A("s_add_u32 s71, s71, s7"); A("s_lshl_b32 s71, s71, 11"); A(f"s_add_u32 s71, s71, {WS_M1}")
            A("v_and_b32 v7, 15, v0"); A("v_lshlrev_b32 v7, 11, v7"); A("v_bfe_u32 v6, v0, 4, 1"); A("v_lshlrev_b32 v6, 4, v6"); A("v_add_u32 v7, v7, v6")
            A("s_lshl_b32 s72, s6, 17"); A("s_lshl_b32 s12, s9, 5"); A("s_add_u32 s72, s72, s12"); A(f"s_add_u32 s72, s72, {WS_M2}")
            A(f"s_add_u32 s73, s72, {48*2048}")
            A("s_lshl_b32 s12, s13, 15"); A("s_add_u32 s72, s72, s12")
            A("v_lshlrev_b32 v6, 4, v0")
    stamp()
    A("ds_write_b128 v4, v[20:23]"); A("ds_write_b128 v4, v[24:27] offset:512")
    while issued[0] < len(items): issue()
    A("s_waitcnt lgkmcnt(0)")
    A("s_barrier")
    A.c("---- hand-off 1: gather the 8 splits of my 64 rows (wave 1 polls), project through wo ----")
    A("s_cmp_lg_u32 s13, 0"); A("s_cbranch_scc1 L_nopoll1")
    n = poll_begin()
    A("buffer_load_dwordx4 v[44:47], v5, s[40:43], s71 offen sc1")
    A("buffer_load_dwordx4 v[48:51], v5, s[40:43], s71 offen offset:16 sc1")
    A("s_waitcnt vmcnt(0)")
    A("v_max3_u32 v9, v44, v45, v46"); A("v_max3_u32 v8, v47, v48, v49"); A("v_max3_u32 v9, v9, v50, v51"); A("v_max_u32 v9, v9, v8")
    A("v_cmp_eq_u32 vcc, -1, v9")
    poll_end_masked(n, sl1)
    for perm in ("quad_perm:[1,0,3,2]", "quad_perm:[2,3,0,1]", "row_half_mirror"):
        for t in range(8): A(f"v_add_f32_dpp v{44+t}, v{44+t}, v{44+t} {perm} {DPP}")
    for t in range(8): A(f"v_cvt_pk_bf16_f32 v{44+t}, v{44+t}, v{44+t}")
    A(f"ds_write_b128 v6, v[44:47] offset:{L_PP}"); A(f"ds_write_b128 v6, v[48:51] offset:{L_PP+1024}")
    A("s_waitcnt lgkmcnt(0)")
    A("s_barrier")
    A("s_branch L_gotpp")
    A("L_nopoll1:")
    A("s_barrier")
    A(f"ds_read_b128 v[44:47], v6 offset:{L_PP}"); A(f"ds_read_b128 v[48:51], v6 offset:{L_PP+1024}")
    A("s_waitcnt vmcnt(0) lgkmcnt(0)")
    A("L_gotpp:")
    stamp()
    for t in range(8):
        a = 28 + 4 * (t % 4)
        for r in range(4): A(f"v_and_b32 v{a+r}, v{16+r}, v{44+t}")
        for bl in range(3):
            d = 52 + 4 * bl
            A(f"v_mfma_f32_16x16x32_bf16 v[{d}:{d+3}], v[{a}:{a+3}], {reg[('w', 3*t+bl)]}, " + ("0" if t == 0 else f"v[{d}:{d+3}]"))
    for bl in range(3):
        d = 52 + 4 * bl; x = 64 + 4 * bl
        for r in range(4): A(f"v_permlane32_swap_b32 v{d+r}, v{x+r}")
    for bl in range(3):
        d = 52 + 4 * bl; x = 64 + 4 * bl
        for r in range(4): A(f"v_add_f32_dpp v{d+r}, v{x+r}, v{d+r} row_ror:8 {DPP}")
    for r in range(4): A(f"v_mov_b32_dpp v{52+r}, v{56+r} row_ror:8 row_mask:0xf bank_mask:0xc")
    for r in range(4): A(f"v_min_u32 v{52+r}, -2, v{52+r}")
    for r in range(4): A(f"v_min_u32 v{60+r}, -2, v{60+r}")
    A("s_mov_b32 exec_hi, 0")
    A("buffer_store_dwordx4 v[52:55], v7, s[40:43], s72 offen sc1")
    A("s_cmp_lg_u32 s13, 0"); A("s_cbranch_scc1 L_sdone")
    A("s_mov_b32 exec_lo, 0x00ff00ff")
    A("buffer_store_dwordx4 v[60:63], v7, s[40:43], s73 offen sc1")
    A("L_sdone:")
    stamp()
    dump_stamps(nst[0])
    A("s_endpgm")

    nst[0] = 1
    A.c("================ helper wave ================")
    A("L_helper:")
    A("v_lshlrev_b32 v1, 4, v0")
    A(f"v_mov_b32 v41, {L_NONCE}"); A("v_mov_b32 v42, 0"); A("v_mov_b32 v43, 0"); A("ds_write_b32 v41, v42 offset:4"); A("ds_write_b64 v41, v[42:43] offset:8")
    A("v_mul_u32_u24 v2, 896, v4"); A("v_lshlrev_b32 v6, 6, v5"); A("v_add_u32 v2, v2, v6")
    A("v_mov_b32 v7, 0x40000000"); A("v_cmp_lt_u32 s[80:81], 13, v5"); A("v_cndmask_b32 v2, v2, v7, s[80:81]")
    A("s_waitcnt lgkmcnt(0)")
    A("s_load_dword s10, s[38:39], 0")
    srd(44, 16, 3584)
    X = 16
    A("s_sub_u32 s12, s14, 1"); A("s_cmp_lt_u32 s12, 3"); A("s_cbranch_scc0 L_nox")
    for t in range(4): A(f"buffer_load_dwordx4 v[{X+4*t}:{X+4*t+3}], v2, s[44:47], 0 offen offset:{16*t}")
    A("L_nox:")
    srd(40, 38, WS_SIZE)
    A("s_barrier")
    A("s_sub_u32 s12, s14, 1"); A("s_cmp_lt_u32 s12, 3"); A("s_cbranch_scc0 L_noln")
    A("v_lshlrev_b32 v15, 10, v4"); A("v_add_u32 v15, v15, v6")
    A("s_mov_b32 s13, 3")
    proj_setup("s13")
    A("s_waitcnt vmcnt(0) lgkmcnt(0)")
    A.c("---- LayerNorm (bf16 rounding after every op, as the reference) ----")
    F = 64
    for i in range(16):
        A(f"v_lshlrev_b32 v{F+2*i}, 16, v{X+i}"); A(f"v_and_b32 v{F+2*i+1}, 0xffff0000, v{X+i}")
    A(f"v_pk_add_f32 v[32:33], v[{F}:{F+1}], v[{F+2}:{F+3}]"); A(f"v_pk_add_f32 v[34:35], v[{F+4}:{F+5}], v[{F+6}:{F+7}]")
    for i in range(4, 16, 2):
        A(f"v_pk_add_f32 v[32:33], v[32:33], v[{F+2*i}:{F+2*i+1}]"); A(f"v_pk_add_f32 v[34:35], v[34:35], v[{F+2*i+2}:{F+2*i+3}]")
    A("v_pk_add_f32 v[32:33], v[32:33], v[34:35]"); A("v_add_f32 v32, v32, v33")
    for k in (8, 4, 2, 1): A(f"v_add_f32_dpp v32, v32, v32 row_ror:{k} {DPP}")
    A(f"s_mov_b32 s12, {f2u(1.0/448)}")
    A("v_mul_f32 v32, s12, v32"); A("v_mov_b32 v33, v32")
    A("v_mov_b32 v34, 0"); A("v_mov_b32 v35, 0"); A("v_mov_b32 v36, 0"); A("v_mov_b32 v37, 0")
    for i in range(0, 16, 2):
        A(f"v_pk_add_f32 v[38:39], v[{F+2*i}:{F+2*i+1}], v[32:33] neg_lo:[0,1] neg_hi:[0,1]")
        A(f"v_pk_add_f32 v[40:41], v[{F+2*i+2}:{F+2*i+3}], v[32:33] neg_lo:[0,1] neg_hi:[0,1]")
        A("v_pk_fma_f32 v[34:35], v[38:39], v[38:39], v[34:35]"); A("v_pk_fma_f32 v[36:37], v[40:41], v[40:41], v[36:37]")
    A("v_pk_add_f32 v[34:35], v[34:35], v[36:37]"); A("v_add_f32 v34, v34, v35")
    A("v_cndmask_b32 v34, v34, 0, s[80:81]")
    for k in (8, 4, 2, 1): A(f"v_add_f32_dpp v34, v34, v34 row_ror:{k} {DPP}")
    A("v_mul_f32 v34, s12, v34")
    bf16r("v32", "v32"); A("v_mov_b32 v33, v32")
    bf16r("v34", "v34")
    A(f"v_add_f32 v34, {hex(f2u(1e-5))}, v34"); bf16r("v34", "v34")
    A("v_sqrt_f32 v34, v34"); bf16r("v34", "v34")
    A("v_rcp_f32 v34, v34"); A("v_mov_b32 v35, v34")
    for i in range(16): A(f"v_pk_add_f32 v[{F+2*i}:{F+2*i+1}], v[{F+2*i}:{F+2*i+1}], v[32:33] neg_lo:[0,1] neg_hi:[0,1]")
    for i in range(16): A(f"v_cvt_pk_bf16_f32 v{X+i}, v{F+2*i}, v{F+2*i+1}")
    for i in range(16): A(f"v_lshlrev_b32 v{F+2*i}, 16, v{X+i}"); A(f"v_and_b32 v{F+2*i+1}, 0xffff0000, v{X+i}")
    for i in range(16): A(f"v_pk_mul_f32 v[{F+2*i}:{F+2*i+1}], v[{F+2*i}:{F+2*i+1}], v[34:35]")
    for i in range(16): A(f"v_cvt_pk_bf16_f32 v{X+i}, v{F+2*i}, v{F+2*i+1}")
    for t in range(4): A(f"ds_write_b128 v15, v[{X+4*t}:{X+4*t+3}] offset:{L_XN + 16*t}")
    A("s_add_u32 s12, s10, 1")
    A("v_mov_b32 v42, s12"); A("ds_write_b32 v12, v42")
    A("s_waitcnt lgkmcnt(0)")
    stamp()
    A("s_barrier")
    if diag: A("s_waitcnt lgkmcnt(0)")
    proj_run()
    if diag:
        A("s_branch L_lnd")
    A("L_noln:")
    if diag:
        nst[0] -= 1; stamp(); A("L_lnd:")
    A.c("---- down-projection job: its 64 rows of w2 ----")
    A("s_cmp_lg_u32 s14, 4"); A("s_cbranch_scc1 L_nod0")
    srd(60, 32, 0 if notile else 1792 * 896)
    A(f"s_mul_i32 s12, s15, {64*896}")
    for t in range(56):
        A(f"s_mov_b32 m0, {L_T + t*1024}")
        if t: A("s_add_u32 s12, s12, 1024")
        else: A("s_nop 0")
        A(f"buffer_load_dwordx4 v1, s[60:63], s12 offen{wmod} lds")
    A("L_nod0:")
    A("s_waitcnt lgkmcnt(0)")
    A("s_add_u32 s10, s10, 1")
    stamp()
    for r in range(4): A(f"v_mov_b32 v{8+r}, -1")
    A("s_lshl_b32 s71, s8, 3"); A("s_add_u32 s71, s71, s7"); A("s_lshl_b32 s71, s71, 11"); A(f"s_add_u32 s71, s71, {WS_M1}")
    A("s_lshl_b32 s72, s6, 6"); A("s_add_u32 s72, s72, s9"); A("s_lshl_b32 s72, s72, 11"); A(f"s_add_u32 s72, s72, {WS_M2}")
    for s_ in ("s71", "s72"):
        for o in (0, 1024):
            if not noclear: A(f"buffer_store_dwordx4 v[8:11], v1, s[40:43], {s_} offen offset:{o} sc1")
    A(f"v_mov_b32 v41, {L_NONCE}")
    lds_wait("L_hq", "v41", 8, "v40", 4)
    A.c("---- gather q of my two heads ----")
    A(f"s_mul_i32 s12, s6, {PGROW}"); A("s_lshl_b32 s13, s4, 11"); A("s_add_u32 s12, s12, s13"); A(f"s_add_u32 s12, s12, {WS_PG}")
    n = poll_begin()
    A("buffer_load_dwordx4 v[32:35], v1, s[40:43], s12 offen sc1")
    A("buffer_load_dwordx4 v[36:39], v1, s[40:43], s12 offen offset:1024 sc1")
    A("s_waitcnt vmcnt(0)")
    A("v_xor_b32 v40, s10, v33"); A("v_xor_b32 v41, s10, v35"); A("v_xor_b32 v42, s10, v37"); A("v_xor_b32 v43, s10, v39")
    A("v_or3_b32 v40, v40, v41, v42"); A("v_or_b32 v40, v40, v43")
    A("v_cmp_ne_u32 vcc, 0, v40")
    poll_end_masked(n, slq)
    A("v_lshlrev_b32 v40, 3, v0"); A(f"v_add_u32 v40, {L_Q}, v40")
    A("ds_write2_b32 v40, v32, v34 offset0:0 offset1:1")
    A("ds_write2_b32 v40, v36, v38 offset0:128 offset1:129")
    A(f"v_mov_b32 v41, {L_NONCE}"); A("v_mov_b32 v42, s10"); A("ds_write_b32 v41, v42")
    A("s_waitcnt lgkmcnt(0)")
    A("v_mov_b32 v44, 1"); A("ds_write_b32 v41, v44 offset:4")
    A("s_lshl_b32 s12, s6, 6"); A("s_add_u32 s12, s12, s9"); A("s_lshl_b32 s12, s12, 2"); A(f"s_add_u32 s12, s12, {WS_RDY}")
    A("v_mov_b32 v43, 0")
    A("s_mov_b64 exec, 1")
    A("buffer_store_dword v42, v43, s[40:43], s12 offen sc1")
    A("s_mov_b64 exec, -1")
    stamp()
    A.c("---- down projection: h = silu(gate) * up for 64 columns, times 64 rows of w2 ----")
    A("s_cmp_lg_u32 s14, 4"); A("s_cbranch_scc1 L_nod1")
    rowmasks()
    A(f"v_mul_u32_u24 v40, {PGROW}, v4"); A("v_lshlrev_b32 v41, 4, v5"); A("v_add_u32 v40, v40, v41")
    A("s_lshl_b32 s12, s15, 8"); A(f"s_add_u32 s12, s12, {WS_PG + 2048*8}"); A(f"s_add_u32 s13, s12, {896*8}")
    n = poll_begin()
    A("buffer_load_dwordx4 v[16:19], v40, s[40:43], s12 offen sc1")
    A("buffer_load_dwordx4 v[20:23], v40, s[40:43], s13 offen sc1")
    A("s_waitcnt vmcnt(0)")
    for i in range(4): A(f"v_xor_b32 v{24+i}, s10, v{17+2*i}")
    A("v_or3_b32 v24, v24, v25, v26"); A("v_or_b32 v24, v24, v27")
    A("v_cmp_ne_u32 vcc, 0, v24")
    poll_end_masked(n, slm)
    A(f"s_mov_b32 s13, {f2u(-LOG2E)}")
    for i in range(2):
        A(f"v_lshlrev_b32 v{24+2*i}, 16, v{16+2*i}"); A(f"v_and_b32 v{25+2*i}, 0xffff0000, v{16+2*i}")
        A(f"v_lshlrev_b32 v{28+2*i}, 16, v{20+2*i}"); A(f"v_and_b32 v{29+2*i}, 0xffff0000, v{20+2*i}")
    for i in range(4): A(f"v_mul_f32 v{32+i}, s13, v{24+i}")
    for i in range(4): A(f"v_exp_f32 v{32+i}, v{32+i}")
    for i in range(4): A(f"v_add_f32 v{32+i}, 1.0, v{32+i}")
    for i in range(4): A(f"v_rcp_f32 v{32+i}, v{32+i}")
    for i in range(4): A(f"v_mul_f32 v{32+i}, v{24+i}, v{32+i}")
    for i in range(4): bf16r(f"v{32+i}", f"v{32+i}")
    for i in range(4): A(f"v_mul_f32 v{32+i}, v{32+i}, v{28+i}")
    A("v_cvt_pk_bf16_f32 v32, v32, v33"); A("v_cvt_pk_bf16_f32 v33, v34, v35")
    A("v_lshlrev_b32 v34, 3, v0")
    A(f"ds_write_b64 v34, v[32:33] offset:{L_H}")
    A("v_and_b32 v48, 3, v0"); A("v_lshlrev_b32 v35, 7, v48"); A("v_lshlrev_b32 v36, 4, v4"); A("v_add_u32 v35, v35, v36")
    A("v_bfe_u32 v50, v0, 2, 2"); A("v_lshlrev_b32 v51, 3, v4"); A("v_add_u32 v50, v50, v51")
    A("v_mul_u32_u24 v50, 896, v50"); A("v_lshlrev_b32 v51, 3, v48"); A("v_add_u32 v50, v50, v51")
    A(f"v_add_u32 v51, {32*896}, v50")
    A(f"v_mul_u32_u24 v44, {56*1792}, v4"); A("v_bfe_u32 v45, v0, 3, 1"); A("v_mul_u32_u24 v45, 1792, v45"); A("v_add_u32 v44, v44, v45")
    A("v_and_b32 v45, 7, v0"); A("v_lshlrev_b32 v45, 3, v45"); A("v_add_u32 v44, v44, v45")
    A("s_lshl_b32 s12, s15, 6"); A(f"s_add_u32 s12, s12, {WS_FG}")
    A("s_waitcnt lgkmcnt(0)")
    A(f"ds_read_b128 v[56:59], v35 offset:{L_H}"); A(f"ds_read_b128 v[60:63], v35 offset:{L_H+64}")
    B2 = 64
    for g0 in range(0, 28, 3):
        cts = list(range(g0, min(28, g0 + 3)))
        A("s_waitcnt lgkmcnt(0)")
        for z, ct in enumerate(cts):
            r = B2 + 8 * z
            A(f"ds_read_b64_tr_b16 v[{r}:{r+1}], v50 offset:{L_T + 32*ct}")
            A(f"ds_read_b64_tr_b16 v[{r+2}:{r+3}], v50 offset:{L_T + 32*ct + 3584}")
            A(f"ds_read_b64_tr_b16 v[{r+4}:{r+5}], v51 offset:{L_T + 32*ct}")
            A(f"ds_read_b64_tr_b16 v[{r+6}:{r+7}], v51 offset:{L_T + 32*ct + 3584}")
        A("s_waitcnt lgkmcnt(0)")
        for z, ct in enumerate(cts):
            r = B2 + 8 * z; d = 96 + 4 * z
            A(f"v_mfma_f32_16x16x32_bf16 v[{d}:{d+3}], v[56:59], v[{r}:{r+3}], 0")
            A(f"v_mfma_f32_16x16x32_bf16 v[{d}:{d+3}], v[60:63], v[{r+4}:{r+7}], v[{d}:{d+3}]")
        for z, ct in enumerate(cts):
            d = 96 + 4 * z; o = 112 + 2 * z
            pick_row(f"v{o}", d); A(f"v_mov_b32 v{o+1}, s10")
            A(f"buffer_store_dwordx2 v[{o}:{o+1}], v44, s[40:43], s12 offen sc1")
            A("s_add_u32 s12, s12, 3584")
    A("L_nod1:")
    stamp()
    A.c("---- late gathers, all in one round trip: ready tags of my batch row, down-projection partials, softmax statistics ----")
    srd(64, 34, 3584)
    A("v_and_b32 v34, 1, v0")
    A("v_lshlrev_b32 v60, 3, v34")
    A("s_mul_i32 s70, s6, 896"); A("s_lshl_b32 s13, s9, 4"); A("s_add_u32 s70, s70, s13")
    A("v_lshlrev_b32 v32, 2, v0")
    A("s_lshl_b32 s60, s6, 8"); A(f"s_add_u32 s60, s60, {WS_RDY}")
    A("v_lshlrev_b32 v35, 5, v0")
    A("s_min_u32 s13, s9, 55")
    A("s_mul_i32 s61, s6, 56"); A("s_add_u32 s61, s61, s13"); A("s_mul_i32 s61, s61, 1792"); A(f"s_add_u32 s61, s61, {WS_FG}")
    A("s_lshl_b32 s62, s8, 10"); A(f"s_add_u32 s62, s62, {WS_ML}")
    for i in range(8): A(f"v_mov_b32 v{16+i}, 0")
    A("v_mov_b32 v44, 0xff800000"); A("v_mov_b32 v46, 0")
    A(f"v_mov_b32 v41, {L_NONCE}")
    lds_wait("L_hl", "v41", 12, "v40", 4)
    stamp()
    A("buffer_load_dwordx2 v[62:63], v60, s[44:47], s70 offen")
    A("buffer_load_dword v33, v32, s[40:43], s60 offen sc1")
    A("s_mov_b32 exec_hi, 0x00ffffff")
    A("buffer_load_dwordx4 v[16:19], v35, s[40:43], s61 offen sc1")
    A("buffer_load_dwordx4 v[20:23], v35, s[40:43], s61 offen offset:16 sc1")
    A("s_mov_b32 exec_lo, 0x3f3f3f3f"); A("s_mov_b32 exec_hi, 0x3f3f3f3f")
    A("buffer_load_dwordx4 v[44:47], v1, s[40:43], s62 offen sc1")
    A("s_mov_b64 exec, -1")
    A("s_waitcnt vmcnt(0)")
    lab[0] += 1; n = lab[0]
    A(f"s_mov_b32 s11, {SPIN}"); A(f"s_branch L_chk{n}")
    A(f"L_poll{n}:")
    A("buffer_load_dword v33, v32, s[40:43], s60 offen sc1")
    A("s_waitcnt vmcnt(0)")
    A(f"L_chk{n}:")
    A("v_cmp_ne_u32 vcc, s10, v33")
    poll_end_masked(n, slm)
    A("s_mov_b32 exec_hi, 0x00ffffff")
    lab[0] += 1; n = lab[0]
    A(f"s_mov_b32 s11, {SPIN}"); A(f"s_branch L_chk{n}")
    A(f"L_poll{n}:")
    A("buffer_load_dwordx4 v[16:19], v35, s[40:43], s61 offen sc1")
    A("buffer_load_dwordx4 v[20:23], v35, s[40:43], s61 offen offset:16 sc1")
    A("s_waitcnt vmcnt(0)")
    A(f"L_chk{n}:")
    for i in range(4): A(f"v_xor_b32 v{24+i}, s10, v{17+2*i}")
    A("v_or3_b32 v24, v24, v25, v26"); A("v_or_b32 v24, v24, v27")
    A("v_cmp_ne_u32 vcc, 0, v24")
    poll_end_masked(n, slm)
    A.c("---- gate value g for my 8 output columns ----")
    for perm in ("quad_perm:[2,3,0,1]", "row_ror:4", "row_ror:8"):
        for i in range(4): A(f"v_add_f32_dpp v{16+2*i}, v{16+2*i}, v{16+2*i} {perm} {DPP}")
    xrow("v_add_f32", [f"v{16+2*i}" for i in range(4)], [f"v{17+2*i}" for i in range(4)])
    A(f"s_mov_b32 s13, {f2u(-LOG2E)}")
    G = 56
    for i in range(4): bf16r(f"v{16+2*i}", f"v{16+2*i}")
    for i in range(4): A(f"v_mul_f32 v{G+i}, s13, v{16+2*i}")
    for i in range(4): A(f"v_exp_f32 v{G+i}, v{G+i}")
    for i in range(4): A(f"v_add_f32 v{G+i}, 1.0, v{G+i}")
    for i in range(4): A(f"v_rcp_f32 v{G+i}, v{G+i}")
    for i in range(4): A(f"v_mul_f32 v{G+i}, v{16+2*i}, v{G+i}")
    for i in range(4): bf16r(f"v{G+i}", f"v{G+i}")
    A("v_lshlrev_b32 v52, 16, v62"); A("v_and_b32 v53, 0xffff0000, v62"); A("v_lshlrev_b32 v54, 16, v63"); A("v_and_b32 v55, 0xffff0000, v63")
    stamp()
    A.c("---- softmax statistics of the whole row: per-wave factors exp(m_w - M) / L ----")
    A("s_mov_b32 exec_lo, 0x3f3f3f3f"); A("s_mov_b32 exec_hi, 0x3f3f3f3f")
    lab[0] += 1; n = lab[0]
    A(f"s_mov_b32 s11, {SPIN}"); A(f"s_branch L_chk{n}")
    A(f"L_poll{n}:")
    A("buffer_load_dwordx4 v[44:47], v1, s[40:43], s62 offen sc1")
    A("s_waitcnt vmcnt(0)")
    A(f"L_chk{n}:")
    A("v_xor_b32 v20, s10, v45"); A("v_xor_b32 v21, s10, v47"); A("v_or_b32 v20, v20, v21")
    A("v_cmp_ne_u32 vcc, 0, v20")
    poll_end_masked(n, slm)
    A("v_mov_b32 v20, v44")
    for perm in ("quad_perm:[2,3,0,1]", "row_ror:4", "row_ror:8"): A(f"v_max_f32_dpp v20, v20, v20 {perm} {DPP}")
    xrow("v_max_f32", ["v20"], ["v21"])
    A(f"s_mov_b32 s13, {f2u(LOG2E/16)}")
    A("v_sub_f32 v20, v44, v20"); A("v_mul_f32 v20, s13, v20"); A("v_exp_f32 v20, v20")
    A("v_mul_f32 v21, v20, v46")
    for perm in ("quad_perm:[2,3,0,1]", "row_ror:4", "row_ror:8"): A(f"v_add_f32_dpp v21, v21, v21 {perm} {DPP}")
    xrow("v_add_f32", ["v21"], ["v22"])
    A("v_rcp_f32 v21, v21"); A("v_mul_f32 v20, v20, v21")
    A("v_and_b32 v22, 1, v0"); A("v_lshlrev_b32 v22, 7, v22"); A("v_lshrrev_b32 v23, 1, v0"); A("v_lshlrev_b32 v23, 2, v23"); A("v_add_u32 v22, v22, v23")
    A(f"ds_write_b32 v22, v20 offset:{L_C}")
    A("s_lshl_b32 s12, s7, 4"); A("v_mov_b32 v22, s12")
    A("s_waitcnt lgkmcnt(0)")
    A(f"ds_read_b128 v[24:27], v22 offset:{L_C}"); A(f"ds_read_b128 v[28:31], v22 offset:{L_C+128}")
    A("v_lshrrev_b32 v22, 3, v0"); A("v_lshlrev_b32 v22, 11, v22"); A("v_and_b32 v23, 7, v0"); A("v_lshlrev_b32 v23, 4, v23"); A("v_add_u32 v22, v22, v23")
    A(f"v_add_u32 v23, {L_ACC}, v1")
    A("s_lshl_b32 s12, s8, 14"); A("s_lshl_b32 s13, s7, 8"); A("s_add_u32 s12, s12, s13"); A(f"s_add_u32 s12, s12, {WS_M1}")
    stamp()
    A("s_waitcnt lgkmcnt(0)")
    A("s_barrier")
    A.c("---- combine the three waves, publish the normalised partial ----")
    for h in range(2):
        for w in range(NS):
            r = 64 + 16 * h + 4 * w
            A(f"ds_read_b128 v[{r}:{r+3}], v23 offset:{w*2048 + h*1024}")
    for h in range(2):
        r0 = 64 + 16 * h
        A(f"s_waitcnt lgkmcnt({NS if h == 0 else 0})")
        for w in range(NS):
            for e in range(4):
                if w == 0: A(f"v_mul_f32 v{r0+e}, v{24+4*h}, v{r0+e}")
                else: A(f"v_fmac_f32 v{r0+e}, v{24+4*h+w}, v{r0+4*w+e}")
        for e in range(4): A(f"v_min_u32 v{r0+e}, -2, v{r0+e}")
        A(f"buffer_store_dwordx4 v[{r0}:{r0+3}], v22, s[40:43], s12 offen offset:{128*h} sc1")
    stamp()
    A("s_barrier")
    A("s_cmp_ge_u32 s9, 56"); A("s_cbranch_scc1 L_fin")
    A.c("---- hand-off 2: sum the 64 projected partials of my 8 columns, gate, residual ----")
    n = poll_begin()
    A("buffer_load_dwordx4 v[16:19], v1, s[40:43], s72 offen sc1")
    A("buffer_load_dwordx4 v[20:23], v1, s[40:43], s72 offen offset:1024 sc1")
    A("s_waitcnt vmcnt(0)")
    A("v_max3_u32 v24, v16, v17, v18"); A("v_max3_u32 v25, v19, v20, v21"); A("v_max3_u32 v24, v24, v22, v23"); A("v_max_u32 v24, v24, v25")
    A("v_cmp_eq_u32 vcc, -1, v24")
    poll_end_masked(n, sl2)
    for e in range(4): A(f"v_add_f32 v{16+e}, v{16+e}, v{20+e}")
    for perm in ("quad_perm:[2,3,0,1]", "row_ror:4", "row_ror:8"):
        for e in range(4): A(f"v_add_f32_dpp v{16+e}, v{16+e}, v{16+e} {perm} {DPP}")
    xrow("v_add_f32", [f"v{16+e}" for e in range(4)], [f"v{20+e}" for e in range(4)])
    for e in range(4): bf16r(f"v{16+e}", f"v{16+e}")
    for e in range(4): A(f"v_mul_f32 v{16+e}, v{16+e}, v{G+e}")
    for e in range(4): bf16r(f"v{16+e}", f"v{16+e}")
    for e in range(4): A(f"v_add_f32 v{16+e}, v{52+e}, v{16+e}")
    A("v_cvt_pk_bf16_f32 v16, v16, v17"); A("v_cvt_pk_bf16_f32 v17, v18, v19")
    A("s_mov_b64 exec, 3")
    A("buffer_store_dwordx2 v[16:17], v60, s[64:67], s70 offen")
    A("s_cmp_lg_u32 s2, 0"); A("s_cbranch_scc1 L_fin")
    A("s_mov_b64 exec, 1")
    A("v_mov_b32 v18, 0"); A("v_mov_b32 v19, s10")
    A("buffer_store_dword v19, v18, s[40:43], 0 offen sc1")
    A("L_fin:")
    stamp()
    dump_stamps(nst[0])
    A("L_end:"); A("s_endpgm")
    A('.section .rodata,"a"'); A(".p2align 6"); A(f".amdhsa_kernel {KNAME}")
    A("  .amdhsa_next_free_vgpr 512"); A("  .amdhsa_next_free_sgpr 102"); A("  .amdhsa_accum_offset 256")
    A("  .amdhsa_group_segment_fixed_size 0"); A("  .amdhsa_kernarg_size 96"); A("  .amdhsa_user_sgpr_count 2")
    A("  .amdhsa_user_sgpr_kernarg_segment_ptr 1"); A("  .amdhsa_system_sgpr_workgroup_id_x 1"); A(".end_amdhsa_kernel")
    text, npad = A.text()
    return HEADER + text

if __name__ == "__main__":
    import json
    kw = json.loads(sys.argv[2]) if len(sys.argv) > 2 else {}
    open(sys.argv[1], "w").write(gen(**kw))
```

```python
import re

TRANS = ("v_exp_f32", "v_log_f32", "v_rcp_f32", "v_rsq_f32", "v_sqrt_f32", "v_sin_f32", "v_cos_f32")

def regs_of(tok):
    tok = tok.strip()
    neg = tok.lstrip("-")
    m = re.fullmatch(r"abs\((.*)\)", neg)
    if m: neg = m.group(1)
    m = re.fullmatch(r"\|(.*)\|", neg)
    if m: neg = m.group(1)
    m = re.fullmatch(r"([vsa])(\d+)", neg)
    if m: return [(m.group(1), int(m.group(2)))]
    m = re.fullmatch(r"([vsa])\[(\d+):(\d+)\]", neg)
    if m: return [(m.group(1), i) for i in range(int(m.group(2)), int(m.group(3)) + 1)]
    if neg == "vcc": return [("s", "vcc")]
    if neg in ("vcc_lo", "vcc_hi"): return [("s", "vcc")]
    if neg == "exec" or neg in ("exec_lo", "exec_hi"): return [("s", "exec")]
    if neg == "m0": return [("s", "m0")]
    return []

def split_ops(rest):
    out = []; depth = 0; cur = ""
    for ch in rest:
        if ch in "[(": depth += 1
        if ch in "])": depth -= 1
        if ch == "," and depth == 0:
            out.append(cur.strip()); cur = ""
        else: cur += ch
    if cur.strip(): out.append(cur.strip())
    return out

class Ins:
    def __init__(self, text):
        self.text = text
        body = text.split(";")[0].strip()
        self.label = body.endswith(":")
        self.directive = body.startswith(".")
        self.op = "" if (self.label or self.directive or not body) else body.split()[0]
        self.w = []; self.r = []; self.kind = "other"
        if not self.op: return
        rest = body[len(self.op):].strip()
        ops = split_ops(rest)
        toks = []
        mods = ""
        for i, o in enumerate(ops):
            parts = o.split()
            toks.append(parts[0] if parts else "")
            if len(parts) > 1: mods += " " + " ".join(parts[1:])
        self.mods = mods
        op = self.op
        self.dpp = ("_dpp" in op) or ("quad_perm" in rest) or ("row_" in rest)
        if op.startswith("v_mfma"):
            self.kind = "mfma"
            self.D = regs_of(toks[0]); self.A = regs_of(toks[1]); self.B = regs_of(toks[2]); self.C = regs_of(toks[3])
            self.w = self.D; self.r = self.A + self.B + self.C
            self.passes = 8 if "32x32" in op else 4
        elif op.startswith("v_"):
            self.kind = "valu"
            if op.startswith("v_cmp"):
                self.w = regs_of(toks[0]); self.r = sum((regs_of(t) for t in toks[1:]), [])
            elif op.startswith("v_permlane") and "swap" in op:
                self.w = regs_of(toks[0]) + regs_of(toks[1]); self.r = list(self.w)
            elif op.startswith(("v_add_co", "v_sub_co", "v_addc_co", "v_subb_co", "v_div_scale", "v_mad_u64")):
                self.w = regs_of(toks[0]) + regs_of(toks[1]); self.r = sum((regs_of(t) for t in toks[2:]), [])
            elif op == "v_nop":
                pass
            else:
                self.w = regs_of(toks[0]); self.r = sum((regs_of(t) for t in toks[1:]), [])
                if op.startswith(("v_fmac", "v_dot2c", "v_writelane")) or self.dpp: self.r += self.w
                if op.startswith("v_cndmask") and len(toks) == 3: self.r += [("s", "vcc")]
        elif op.startswith(("buffer_", "global_")):
            self.kind = "vmem"
            lds = " lds" in (" " + rest) or "load_lds" in op
            self.lds = lds
            allr = sum((regs_of(t) for t in toks), [])
            if "load" in op and not lds:
                self.w = regs_of(toks[0]); self.r = sum((regs_of(t) for t in toks[1:]), [])
            elif "atomic" in op and "sc0" in rest:
                self.w = regs_of(toks[0]); self.r = allr
            else:
                self.r = allr
            if lds: self.r += [("s", "m0")]
            self.wide_store = ("store" in op) and (op.endswith("x4") or op.endswith("x3"))
            if self.wide_store:
                self.data = regs_of(toks[0]) if op.startswith("buffer") else regs_of(toks[1])
        elif op.startswith("ds_"):
            self.kind = "ds"
            if op.startswith(("ds_read", "ds_bpermute", "ds_permute", "ds_swizzle")) or "_rtn" in op:
                self.w = regs_of(toks[0]); self.r = sum((regs_of(t) for t in toks[1:]), [])
            else:
                self.r = sum((regs_of(t) for t in toks), [])
        elif op.startswith("s_"):
            self.kind = "salu"
            if op.startswith(("s_cmp", "s_cbranch", "s_branch", "s_waitcnt", "s_nop", "s_barrier", "s_endpgm", "s_sleep", "s_setprio")):
                self.r = sum((regs_of(t) for t in toks), [])
                if op in ("s_cbranch_vccnz", "s_cbranch_vccz"): self.r += [("s", "vcc")]
            else:
                self.w = regs_of(toks[0]) if toks else []; self.r = sum((regs_of(t) for t in toks[1:]), [])
                if "saveexec" in op: self.w += [("s", "exec")]
    def states(self):
        if self.op == "s_nop":
            return int(self.text.split(";")[0].split()[1], 0) + 1
        return 1 if self.op else 0

def need(p, c):
    n = 0
    pw = set(p.w); cr = set(c.r); cw = set(c.w)
    pv = {x for x in pw if x[0] in "va"}; ps = {x for x in pw if x[0] == "s"}
    if p.kind == "valu":
        if c.kind == "mfma" and pv & cr: n = max(n, 2)
        if c.kind == "valu":
            if c.dpp and pv & cr: n = max(n, 2)
            if c.op.startswith("v_permlane") and pv & cr: n = max(n, 2)
            if p.op.replace("_e32", "").replace("_e64", "") in TRANS and pv & cr: n = max(n, 1)
            if c.op.startswith(("v_readlane", "v_readfirstlane")) and pv & cr: n = max(n, 1)
            if ps & cr: n = max(n, 4 if c.op.startswith(("v_readlane", "v_writelane")) else 2)
            if ("s", "exec") in ps: n = max(n, 5 if c.dpp else (4 if c.op.startswith(("v_readlane", "v_readfirstlane", "v_writelane", "v_permlane")) else 0))
        if c.kind == "vmem" and ps & cr: n = max(n, 5)
        if c.kind == "salu" and ps & cr: n = max(n, 2)
        if c.kind == "mfma" and ("s", "exec") in ps: n = max(n, 4)
    if p.kind == "mfma":
        D = set(p.D)
        big = 8 if p.passes == 4 else 12
        if c.kind == "mfma":
            if D & (set(c.A) | set(c.B)): n = max(n, big)
            if D & set(c.C):
                if not (c.C == p.D and c.passes == p.passes): n = max(n, big - 2)
            if D & set(c.D) and not (D & set(c.C)): n = max(n, big)
        elif c.kind in ("valu", "vmem", "ds"):
            if D & (cr | cw): n = max(n, big)
        if c.kind == "valu" and set(p.C) & cw: n = max(n, 3 if p.passes == 4 else 7)
    if p.kind == "vmem" and getattr(p, "wide_store", False):
        if c.kind in ("valu", "mfma") and set(p.data) & cw: n = max(n, 2)
        if c.kind in ("vmem", "ds") and set(p.data) & cw: n = max(n, 1)
    if p.kind == "salu" and ("s", "m0") in pw and c.kind == "vmem" and getattr(c, "lds", False): n = max(n, 1)
    return n

def pad(lines):
    out = []
    hist = []
    npad = 0
    region = None
    for t in lines:
        ins = Ins(t)
        if not ins.op:
            if ins.label and region is not None and t.strip().rstrip(":") == region: region = None
            out.append(t); continue
        req = 0
        win = hist[-40:]
        for a, (p, _, preg) in enumerate(win):
            k = need(p, ins)
            if k:
                have = sum(st for (_, st, rg) in win[a+1:] if rg is None or rg == region or rg == preg)
                req = max(req, k - have)
        while req > 0:
            k = min(req, 16)
            out.append(f"s_nop {k-1}"); hist.append((Ins("s_nop 0"), k, region)); req -= k; npad += 1
        out.append(t)
        hist.append((ins, ins.states(), region))
        m = re.match(r"s_cbranch_\w+\s+(L_skip\d+)", t.strip())
        if m: region = m.group(1)
    return out, npad

class Asm:
    def __init__(self): self.L = []
    def __call__(self, s):
        for line in s.split("\n"):
            line = line.strip()
            if line: self.L.append(line)
    def c(self, s): self.L.append("; " + s)
    def text(self):
        out, n = pad(self.L)
        res = []
        for l in out:
            if l.endswith(":") or l.startswith(".") or l.startswith(";"): res.append(l)
            else: res.append("    " + l)
        return "\n".join(res) + "\n", n
```

```python
import sys, struct
from asmlib import Asm
KNAME = "recurrent_scan__gqa_block_cached__glu_gated_swiglu__decode_kernel"

WS_PG = 0x1000
WS_FG = 0x30000
WS_ML = 0xA0000
WS_RDY = 0xB0000
WS_CNT = 0xC0000
WS_SCP = 0x280000
BIAS = 1 << 20
WS_M1 = 0x100000
WS_M2 = 0x180000
WS_ST = 0x200000
WS_SIZE = 0x400000
PGROW = 3840 * 8
L_XN = 0
L_PP = 0
L_Q = 4096
L_NONCE = 5120
L_C = 5184
L_H = 5696
L_T = 8192
L_ACC = 66560
L_TOTAL = 72704
NWAVES = 4
NS = 3
SPIN = 40000
LOG2E = 1.4426950408889634
NU = 50
HNAMES = "[start lnDone projpub qgot Djob late g ml m1pub fin]"
SNAMES = "[start projpub ringfull kdone smdone sdone vdone m1got m2pub ntick]"

def f2u(x): return struct.unpack("<I", struct.pack("<f", x))[0]

HEADER = """; Kernarg layout (96 bytes): 0 A_x, 8 A_k_cache, 16 A_v_cache, 24 A_wq, 32 A_wo, 40 B_x (unused by the reference),
"""

def gen(D0=11, R=80, CU=2, kmod=" nt", vmod=" nt", wmod="", womod="", diag=False, sl1=2, sl2=1, slq=16,
        JX=(19, 18, 19, 18, 19, 18, 19, 18), DELTA=16, PR=4, DW=None, DPRE=4, nokv=False, notile=False, nowo=False, slm=32, noclear=False, QAT=48, LAT=16, NPI=4, LWS=2):
    A = Asm()
    PU = 4 * PR; KZ = PU; VZ = PU; NT = 24 * PR
    nst = [0]
    if DW is None: DW = D0
    if DPRE is None: DPRE = D0
    assert sum(JX) == 148 and max(JX) <= 32
    allq = []
    for x in range(8):
        for b in range(4):
            J = JX[x] // 4 + (b < JX[x] % 4)
            t = 1024 - (8 - J) * DELTA
            allq += [(t >> 3) + (DELTA if j >= J else 0) + (j < (t & 7)) for j in range(8)]
    nmin = (min(allq) - (NS - 1) + NS - 1) // NS
    Z = NU - nmin
    assert max(allq) <= NU * NS, max(allq)
    PX = [sum(JX[:x]) for x in range(8)]
    pk = lambda v: sum(e << (8 * i) for i, e in enumerate(v))
    def stamp():
        if diag:
            k = nst[0]; nst[0] += 1
            assert k < 10
            A(f"s_memrealtime s[{82+2*k}:{83+2*k}]")
    def dump_stamps(n):
        if not diag: return
        A("s_waitcnt vmcnt(0) lgkmcnt(0)")
        A(f"s_mul_i32 s12, s2, {NWAVES}"); A("s_add_u32 s12, s12, s3"); A("s_lshl_b32 s12, s12, 6")
        A(f"s_add_u32 s12, s12, {WS_ST}")
        A("s_mov_b64 exec, 1")
        A("v_mov_b32 v4, 0")
        for q in range(0, 10, 2):
            for e in range(2):
                k = q + e
                A(f"v_mov_b32 v{6+e}, s{82+2*k}" if k < n else f"v_mov_b32 v{6+e}, 0")
            A(f"buffer_store_dwordx2 v[6:7], v4, s[40:43], s12 offen offset:{q*4}")
            A("s_nop 1")
        A("s_getreg_b32 s13, hwreg(HW_REG_XCC_ID)"); A("s_nop 0")
        A("v_mov_b32 v6, s13"); A("v_mov_b32 v7, s14")
        A("buffer_store_dwordx2 v[6:7], v4, s[40:43], s12 offen offset:56")
    def srd(d, p, size):
        A(f"s_mov_b32 s{d}, s{p}"); A(f"s_mov_b32 s{d+1}, s{p+1}")
        A(f"s_mov_b32 s{d+2}, {size}"); A(f"s_mov_b32 s{d+3}, 0x20000")
    lab = [0]
    def poll_begin():
        lab[0] += 1
        A(f"s_mov_b32 s11, {SPIN}")
        A(f"L_poll{lab[0]}:")
        return lab[0]
    def poll_end(n, sleep):
        A(f"s_cbranch_vccz L_done{n}")
        A("s_sub_u32 s11, s11, 1")
        A(f"s_cbranch_scc1 L_done{n}")
        if sleep: A(f"s_sleep {sleep}")
        A(f"s_branch L_poll{n}")
        A(f"L_done{n}:")
    def poll_end_masked(n, sleep):
        A(f"s_cbranch_vccz L_done{n}")
        A("s_mov_b64 exec, vcc")
        A("s_sub_u32 s11, s11, 1")
        A(f"s_cbranch_scc1 L_done{n}")
        if sleep: A(f"s_sleep {sleep}")
        A(f"s_branch L_poll{n}")
        A(f"L_done{n}:")
        A("s_mov_b64 exec, -1")
    def lds_wait(name, vaddr, off, tmp, sleep=2):
        A(f"{name}:")
        A(f"ds_read_b32 {tmp}, {vaddr} offset:{off}")
        A("s_waitcnt lgkmcnt(0)")
        A(f"v_cmp_eq_u32 vcc, 0, {tmp}")
        A(f"s_cbranch_vccz {name}_ok")
        A(f"s_sleep {sleep}")
        A(f"s_branch {name}")
        A(f"{name}_ok:")
    DPP = "row_mask:0xf bank_mask:0xf"
    def bf16r(dst, src):
        A(f"v_cvt_pk_bf16_f32 {dst}, {src}, {src}")
        A(f"v_and_b32 {dst}, 0xffff0000, {dst}")
    def xrow(op, regs, tmps):
        for sw in ("v_permlane16_swap_b32", "v_permlane32_swap_b32"):
            for r, t in zip(regs, tmps): A(f"v_mov_b32 {t}, {r}")
            for r, t in zip(regs, tmps): A(f"{sw} {r}, {t}")
            for r, t in zip(regs, tmps): A(f"{op} {r}, {r}, {t}")
    def rowmasks():
        A("s_mov_b32 s74, 0xffff0000"); A("s_mov_b32 s75, 0")
        A("s_mov_b32 s76, 0"); A("s_mov_b32 s77, 0xffff")
        A("s_mov_b32 s78, 0"); A("s_mov_b32 s79, 0xffff0000")
    def pick_row(dst, d):
        A(f"v_cndmask_b32 {dst}, v{d}, v{d+1}, s[74:75]")
        A(f"v_cndmask_b32 {dst}, {dst}, v{d+2}, s[76:77]")
        A(f"v_cndmask_b32 {dst}, {dst}, v{d+3}, s[78:79]")
    AF = 100; BF = AF + 56
    def proj_setup(ct):
        rowmasks()
        A("v_and_b32 v8, 3, v0"); A("v_lshlrev_b32 v9, 10, v8"); A("v_lshlrev_b32 v10, 4, v4"); A("v_add_u32 v9, v9, v10")
        A("v_bfe_u32 v10, v0, 2, 2"); A("v_lshlrev_b32 v11, 3, v4"); A("v_add_u32 v10, v10, v11"); A("v_lshlrev_b32 v10, 7, v10")
        A("v_lshlrev_b32 v11, 3, v8"); A("v_add_u32 v10, v10, v11"); A(f"s_lshl_b32 s12, {ct}, 5"); A("v_add_u32 v10, s12, v10")
        A(f"v_mov_b32 v12, {L_NONCE}")
        A(f"v_mul_u32_u24 v11, {PGROW}, v4"); A("v_lshlrev_b32 v13, 2, v5"); A("v_add_u32 v11, v11, v13")
        A("s_cmp_eq_u32 s14, 1"); A("s_cselect_b32 s72, 0, 4096"); A("s_cmp_eq_u32 s14, 3"); A(f"s_cselect_b32 s72, {4096+1792}, s72")
        A("s_lshl_b32 s12, s15, 6"); A("s_add_u32 s72, s72, s12"); A(f"s_lshl_b32 s12, {ct}, 4"); A("s_add_u32 s72, s72, s12")
        A("s_lshl_b32 s72, s72, 2"); A(f"s_add_u32 s72, s72, {WS_PG}")
    def proj_run(hook=None):
        for t in range(14): A(f"ds_read_b128 v[{AF+4*t}:{AF+4*t+3}], v9 offset:{L_XN + 64*t}")
        A("ds_read_b32 v13, v12")
        if hook: hook(0)
        A("s_waitcnt lgkmcnt(1)")
        for tt in range(14):
            if tt == 7:
                if hook: hook(1)
                A("s_waitcnt lgkmcnt(1)")
            A(f"ds_read_b64_tr_b16 v[{BF+4*tt}:{BF+4*tt+1}], v10 offset:{L_T + 4096*tt}")
            A(f"ds_read_b64_tr_b16 v[{BF+4*tt+2}:{BF+4*tt+3}], v10 offset:{L_T + 4096*tt + 512}")
        for tt in range(14):
            if tt == 0:
                if hook: hook(2)
                A("s_waitcnt lgkmcnt(14)")
            if tt == 7:
                if hook: hook(3)
                A("s_waitcnt lgkmcnt(0)")
            d = 28 + 4 * (tt % 2)
            A(f"v_mfma_f32_16x16x32_bf16 v[{d}:{d+3}], v[{AF+4*tt}:{AF+4*tt+3}], v[{BF+4*tt}:{BF+4*tt+3}], " + ("0" if tt < 2 else f"v[{d}:{d+3}]"))
        for r in range(4): A(f"v_add_f32 v{28+r}, v{28+r}, v{32+r}")
        pick_row("v32", 28)
        A(f"v_mov_b32_dpp v33, v32 quad_perm:[1,0,3,2] {DPP}")
        A("v_cvt_pk_bf16_f32 v12, v32, v33")
        A("s_mov_b32 exec_lo, 0x55555555"); A("s_mov_b32 exec_hi, 0x55555555")
        A("buffer_store_dwordx2 v[12:13], v11, s[40:43], s72 offen sc1")
        A("s_mov_b64 exec, -1")

    A(f"; @launch grid=(256,1,1) block=(256,1,1) lds={L_TOTAL}")
    A('.amdgcn_target "amdgcn-amd-amdhsa--gfx950"')
    A(".text"); A(f".globl {KNAME}"); A(".p2align 8"); A(f".type {KNAME},@function"); A(f"{KNAME}:")
    A("s_cmp_ge_u32 s2, 256"); A("s_cbranch_scc1 L_end")
    A("s_load_dwordx16 s[16:31], s[0:1], 0")
    A("s_load_dwordx8 s[32:39], s[0:1], 64")
    stamp()
    A("v_lshrrev_b32 v1, 6, v0"); A("v_and_b32 v0, 63, v0")
    A("v_readfirstlane_b32 s3, v1")
    A("s_and_b32 s7, s2, 7")
    A("s_lshr_b32 s8, s2, 3")
    A("s_lshr_b32 s6, s8, 3")
    A("s_and_b32 s4, s8, 7")
    A("s_lshl_b32 s9, s4, 3"); A("s_add_u32 s9, s9, s7")
    A("v_lshrrev_b32 v4, 4, v0")
    A("v_and_b32 v5, 15, v0")
    A(f"s_mov_b32 s62, {hex(pk(JX) & 0xffffffff)}"); A(f"s_mov_b32 s63, {hex(pk(JX) >> 32)}")
    A(f"s_mov_b32 s60, {hex(pk(PX) & 0xffffffff)}"); A(f"s_mov_b32 s61, {hex(pk(PX) >> 32)}")
    A("s_lshl_b32 s12, s4, 3")
    A("s_lshr_b64 s[62:63], s[62:63], s12"); A("s_lshr_b64 s[60:61], s[60:61], s12")
    A("s_and_b32 s62, s62, 0xff"); A("s_and_b32 s63, s60, 0xff")
    A("s_lshr_b32 s12, s62, 2"); A("s_and_b32 s13, s62, 3")
    A("s_mul_i32 s61, s12, s6"); A("s_add_u32 s63, s63, s61"); A("s_min_u32 s61, s6, s13"); A("s_add_u32 s63, s63, s61")
    A("s_cmp_lt_u32 s6, s13"); A("s_addc_u32 s60, s12, 0")
    A("s_add_u32 s12, s63, s7")
    A("s_mov_b32 s14, 4"); A("s_sub_u32 s15, s12, 120")
    A("s_sub_u32 s13, s12, 92"); A("s_cmp_lt_u32 s12, 120"); A("s_cselect_b32 s14, 3, s14"); A("s_cselect_b32 s15, s13, s15")
    A("s_sub_u32 s13, s12, 64"); A("s_cmp_lt_u32 s12, 92"); A("s_cselect_b32 s14, 2, s14"); A("s_cselect_b32 s15, s13, s15")
    A("s_cmp_lt_u32 s12, 64"); A("s_cselect_b32 s14, 1, s14"); A("s_cselect_b32 s15, s12, s15")
    A("s_cmp_lt_u32 s7, s60"); A("s_cselect_b32 s14, s14, 0")
    A("s_cmp_eq_u32 s3, 0"); A("s_cbranch_scc1 L_helper")

    A.c("================ stream waves ================")
    A("s_sub_u32 s13, s3, 1")
    A("s_sub_u32 s12, 8, s60"); A(f"s_mul_i32 s12, s12, {DELTA}"); A("s_sub_u32 s12, 1024, s12")
    A("s_lshr_b32 s66, s12, 3"); A("s_and_b32 s67, s12, 7")
    A("s_mov_b32 s61, s66"); A("s_mov_b32 s62, s67")
    A("s_mul_i32 s65, s66, s7"); A("s_min_u32 s12, s7, s67"); A("s_add_u32 s65, s65, s12")
    A("s_min_u32 s12, s7, s60"); A("s_sub_u32 s12, s7, s12"); A(f"s_mul_i32 s12, s12, {DELTA}"); A("s_add_u32 s65, s65, s12")
    A("s_cmp_lt_u32 s7, s67"); A("s_addc_u32 s66, s66, 0")
    A("s_cmp_lt_u32 s7, s60"); A(f"s_cselect_b32 s12, 0, {DELTA}"); A("s_add_u32 s66, s66, s12")
    A("s_sub_u32 s64, s66, s13"); A("s_add_u32 s64, s64, 2"); A("s_mul_i32 s64, s64, 43691"); A("s_lshr_b32 s64, s64, 17")
    A(f"s_sub_u32 s64, {NU}, s64")
    A("s_lshl_b32 s63, s8, 21"); A("s_lshl_b32 s65, s65, 11")
    A("s_lshl_b32 s66, s66, 11")
    if nokv: A("s_mov_b32 s66, 0")
    A("v_lshlrev_b32 v1, 6, v4"); A("v_bfe_u32 v6, v0, 2, 2"); A("v_lshlrev_b32 v6, 9, v6")
    A("v_and_b32 v7, 3, v0"); A("v_lshlrev_b32 v2, 4, v7"); A("v_add3_u32 v1, v1, v6, v2")
    A("s_lshl_b32 s68, s13, 11"); A("s_add_u32 s69, s68, s65"); A(f"s_add_u32 s69, s69, {PU*2048*NS}")
    A("s_add_u32 s65, s63, s65")
    A("s_mov_b32 s46, s66"); A("s_mov_b32 s47, 0x20000"); A(f"s_mov_b32 s50, {0 if nokv else 1 << 21}"); A("s_mov_b32 s51, 0x20000")
    A("s_waitcnt lgkmcnt(0)")
    A("s_add_u32 s44, s18, s65"); A("s_addc_u32 s45, s19, 0")
    A("s_add_u32 s48, s20, s63"); A("s_addc_u32 s49, s21, 0")
    srd(40, 38, WS_SIZE)
    quads = [f"a[{4*i}:{4*i+3}]" for i in range(64)] + [f"v[{100+4*i}:{103+4*i}]" for i in range(35, -1, -1)]
    free = list(quads)
    assert R <= len(free)
    NW = 24
    assert D0 == 11
    vst = [("v", i) for i in range(2 * PU, 2 * NU)]
    items = [("k", i) for i in range(2 * NU)] + vst
    def claim():
        A("s_mov_b32 s79, 1")
        A("s_atomic_add s79, s[80:81], 0 glc")
    pos = {it: n for n, it in enumerate(items)}
    reg = {}
    issued = [0]
    def zone(it):
        t, i = it
        z0 = {"k": KZ, "v": VZ}.get(t)
        if z0 is None: return None
        z = i // 2 - z0
        return z if 0 <= z < Z else None
    nskip = [0]
    def issue(pace=None):
        it = items[issued[0]]
        t, i = it
        r = free.pop(0); reg[it] = r
        z = zone(it)
        if z is not None:
            nskip[0] += 1
            A(f"s_cmp_gt_u32 s64, {z}"); A(f"s_cbranch_scc1 L_skip{nskip[0]}")
        if pace is not None: A(f"s_waitcnt vmcnt({pace})")
        if t == "k":
            A(f"buffer_load_dwordx4 {r}, v1, s[44:47], s68 offen offset:{(i%2)*256}{kmod}")
            if i % 2 == 1: A(f"s_add_u32 s68, s68, {2048*NS}")
        elif t == "v":
            A(f"buffer_load_dwordx4 {r}, v2, s[48:51], s69 offen offset:{(i%2)*256}{vmod}")
            if i % 2 == 1: A(f"s_add_u32 s69, s69, {2048*NS}")
        else:
            tt, bl = i // 3, i % 3
            if bl < 2: A(f"buffer_load_dwordx4 {r}, v3, s[52:55], s70 offen offset:{128*bl}{womod}")
            else:
                A(f"buffer_load_dwordx4 {r}, v3, s[56:59], s70 offen offset:768{womod}")
                A("s_add_u32 s70, s70, 896")
        if z is not None: A(f"L_skip{nskip[0]}:")
        issued[0] += 1
    def release(it): free.append(reg[it])
    def sure_after(k, n):
        return sum(1 for x in range(k + 1, n) if zone(items[x]) is None)
    def wait_for(it):
        n = sure_after(pos[it], issued[0])
        A(f"s_waitcnt vmcnt({min(n,63)})")
        lnd[0] = max(lnd[0], pos[it])
    lnd = [-1]
    def paced_issue():
        if issued[0] < len(items) and free:
            it = items[issued[0]]
            d = DW if it[0] == "w" else D0
            if zone(it) is None:
                k = issued[0] - 1
                while k >= 0 and sure_after(k, issued[0]) < d - 1: k -= 1
                lnd[0] = max(lnd[0], k)
            issue(d - 1); return True
        return False
    def landed(): return lnd[0]

    A.c("---- projection job (q / gate / up): the weight tile goes out first ----")
    A("s_sub_u32 s12, s14, 1"); A("s_cmp_lt_u32 s12, 3"); A("s_cbranch_scc0 L_notile")
    A("s_cmp_eq_u32 s14, 1")
    A("s_cselect_b32 s52, s22, s28"); A("s_cselect_b32 s53, s23, s29")
    A(f"s_mov_b32 s54, {448*3584}"); A(f"s_cselect_b32 s54, {448*8192}, s54"); A("s_mov_b32 s71, 3584"); A("s_cselect_b32 s71, 8192, s71")
    A("s_cmp_eq_u32 s14, 3")
    A("s_cselect_b32 s52, s30, s52"); A("s_cselect_b32 s53, s31, s53")
    A("s_mov_b32 s55, 0x20000")
    if notile: A("s_mov_b32 s54, 0")
    A("v_lshrrev_b32 v6, 3, v0"); A("v_mul_lo_u32 v6, v6, s71"); A("v_and_b32 v7, 7, v0"); A("v_lshlrev_b32 v7, 4, v7"); A("v_add_u32 v6, v6, v7")
    A("s_lshl_b32 s12, s13, 3"); A("s_mul_i32 s12, s12, s71"); A("s_lshl_b32 s66, s15, 7"); A("s_add_u32 s12, s12, s66")
    A("s_mul_i32 s66, s71, 24"); A("s_lshl_b32 s67, s13, 10")
    for t in range(19):
        A(f"s_add_u32 m0, s67, {L_T + t*3072}")
        if t: A("s_add_u32 s12, s12, s66")
        else: A("s_nop 0")
        A(f"buffer_load_dwordx4 v6, s[52:55], s12 offen{wmod} lds")
    A("L_notile:")
    for n in range(DPRE): issue()
    A("s_barrier")
    A("v_lshlrev_b32 v2, 9, v4"); A("v_lshlrev_b32 v6, 4, v5"); A("v_add_u32 v2, v2, v6")
    A("v_mul_u32_u24 v3, 7168, v4"); A("v_and_b32 v6, 7, v0"); A("v_lshlrev_b32 v6, 4, v6"); A("v_add_u32 v3, v3, v6")
    A("v_bfe_u32 v6, v0, 3, 1"); A(f"v_mul_u32_u24 v6, {256*896}, v6"); A("v_add_u32 v3, v3, v6")
    A("s_lshl_b32 s70, s4, 9"); A("s_lshl_b32 s12, s7, 5"); A("s_add_u32 s70, s70, s12"); A("s_mul_i32 s70, s70, 896")
    A("s_lshl_b32 s12, s13, 8"); A("s_add_u32 s70, s70, s12")
    A("v_and_b32 v6, 1, v0"); A("v_mov_b32 v7, 0xffff"); A("v_mov_b32 v8, 0xffff0000")
    A("v_cmp_eq_u32 vcc, 1, v6"); A("v_cndmask_b32 v7, v7, v8, vcc")
    A("v_bfe_u32 v6, v0, 1, 2")
    for r in range(4):
        A(f"v_cmp_eq_u32 vcc, {r}, v6"); A(f"v_cndmask_b32 v{16+r}, 0, v7, vcc")
    for r in range(8): A(f"v_mov_b32 v{20+r}, 0")
    A("s_sub_u32 s12, s14, 1"); A("s_cmp_lt_u32 s12, 3"); A("s_cbranch_scc0 L_noproj")
    proj_setup("s13")
    A(f"s_waitcnt vmcnt({DPRE})")
    save = (issued[0], list(free), lnd[0])
    for n in range(D0 - DPRE): issue()
    A("s_barrier"); proj_run(lambda k: paced_issue() if k < NPI else None)
    A("s_branch L_projdone")
    A("L_noproj:")
    issued[0] = save[0]; free[:] = save[1]; lnd[0] = save[2]
    for n in range(D0 - DPRE): issue()
    for n in range(NPI): paced_issue()
    A("L_projdone:")
    stamp()
    srd(52, 24, 0 if nowo else 4096 * 896)
    A("s_mov_b32 s56, s24"); A("s_mov_b32 s57, s25"); A("s_cmp_eq_u32 s13, 0"); A(f"s_cselect_b32 s58, {0 if nowo else 4096*896}, 0"); A("s_mov_b32 s59, 0x20000")
    A("v_bfe_u32 v6, v0, 3, 1"); A("v_lshlrev_b32 v6, 9, v6"); A("v_lshlrev_b32 v7, 6, v4"); A("v_add_u32 v6, v6, v7")
    A("v_and_b32 v7, 3, v0"); A("v_lshlrev_b32 v7, 4, v7"); A("v_add_u32 v6, v6, v7")
    A(f"v_mov_b32 v7, {L_NONCE}")
    A("v_mov_b32 v8, 1")
    while issued[0] < R:
        paced_issue()
        if issued[0] == QAT: A("ds_write_b32 v7, v8 offset:8")
    stamp()
    M = 96
    lds_wait("L_qwait", "v7", 4, f"v{M}", 1)
    A(f"v_mov_b32 v{M}, 0xff800000"); A("v_mov_b32 v94, 0xff800000")
    A(f"ds_read_b128 v[8:11], v6 offset:{L_Q}"); A(f"ds_read_b128 v[12:15], v6 offset:{L_Q+256}")
    A(f"ds_read_b32 v{M+1}, v7")
    A("s_waitcnt lgkmcnt(0)")
    SC = 44
    def qk_reduce(u):
        d = 28 + 4 * (u % 2)
        A(f"v_mov_b32_dpp v4, v{d} quad_perm:[0,0,0,0] {DPP}")
        A(f"v_mov_b32_dpp v5, v{d+2} quad_perm:[2,2,2,2] {DPP}")
        z = zone(("k", 2*u))
        if z is not None:
            A(f"s_cmp_gt_u32 s64, {z}"); A("s_cselect_b64 s[66:67], -1, 0")
        else: A("s_nop 0")
        A(f"v_add_f32_dpp v4, v{d+1}, v4 quad_perm:[1,1,1,1] {DPP}")
        A(f"v_add_f32_dpp v5, v{d+3}, v5 quad_perm:[3,3,3,3] {DPP}")
        A(f"v_add_f32 v{SC+u}, v4, v5")
        if z is not None: A(f"v_cndmask_b32 v{SC+u}, v{SC+u}, v94, s[66:67]")
        if u % 2 == 1: A(f"v_max3_f32 v{M}, v{M}, v{SC+u-1}, v{SC+u}")
        elif u == NU - 1: A(f"v_max_f32 v{M}, v{M}, v{SC+u}")
    u = 0
    while u < NU:
        k1 = ("k", 2*u+1)
        while pos[k1] > landed() and paced_issue(): pass
        burst = 0
        while u < NU and burst < CU and (pos[("k", 2*u+1)] <= landed() or burst == 0):
            k0, k1 = ("k", 2*u), ("k", 2*u+1)
            if pos[k1] > landed(): wait_for(k1)
            d = 28 + 4 * (u % 2)
            A(f"v_mfma_f32_16x16x32_bf16 v[{d}:{d+3}], {reg[k0]}, v[8:11], 0")
            A(f"v_mfma_f32_16x16x32_bf16 v[{d}:{d+3}], {reg[k1]}, v[12:15], v[{d}:{d+3}]")
            release(k0); release(k1)
            if u > 0: qk_reduce(u - 1)
            u += 1; burst += 1
        if u < NU and pos[("k", 2*u+1)] <= landed(): paced_issue()
    qk_reduce(NU - 1)
    stamp()
    A.c("---- softmax numerators over this wave's keys ----")
    xrow("v_max_f32", [f"v{M}"], ["v4"])
    bf16r(f"v{M}", f"v{M}")
    A(f"s_mov_b32 s12, {f2u(LOG2E/16)}")
    A(f"v_mov_b32 v{M+2}, 0"); A(f"v_mov_b32 v{M+3}, 0")
    for u in range(0, NU, 2):
        a, b_ = SC + u, SC + u + 1
        pkr = f"v{28 + u % 16}" if u < PU else "v4"
        if u == 0:
            for q in range(8): A(f"v_mov_b32 v{29 + 2*q}, v{M+1}")
            A("v_lshrrev_b32 v95, 3, v0"); A("v_lshlrev_b32 v95, 4, v95")
            A(f"s_mul_i32 s78, s8, {NT*128}"); A(f"s_add_u32 s78, s78, {WS_SCP}")
            A("s_mul_i32 s66, s7, 3"); A("s_add_u32 s66, s66, s13"); A("s_lshl_b32 s66, s66, 7"); A("s_add_u32 s66, s66, s78")
        A(f"v_cvt_pk_bf16_f32 {pkr}, v{a}, v{b_}")
        if u < PU and u % 4 == 2:
            r0 = 28 + (u - 2) % 16
            A("s_mov_b32 exec_lo, 0x01010101"); A("s_mov_b32 exec_hi, 0x01010101")
            A(f"buffer_store_dwordx4 v[{r0}:{r0+3}], v95, s[40:43], s66 offen sc1")
            A("s_mov_b64 exec, -1")
            A(f"s_add_u32 s66, s66, {24*128}")
        A(f"v_lshlrev_b32 v{a}, 16, {pkr}"); A(f"v_and_b32 v{b_}, 0xffff0000, {pkr}")
        for r in (a, b_): A(f"v_sub_f32 v{r}, v{r}, v{M}")
        for r in (a, b_): A(f"v_mul_f32 v{r}, s12, v{r}")
        for r in (a, b_): A(f"v_exp_f32 v{r}, v{r}")
        A(f"v_add_f32 v{M+2}, v{M+2}, v{a}"); A(f"v_add_f32 v{M+3}, v{M+3}, v{b_}")
        if u >= PU:
            for r in (a, b_): A(f"v_cvt_pk_bf16_f32 v{r}, v{r}, v{r}")
        if u % 8 == 6: paced_issue()
    A(f"v_add_f32 v{M+2}, v{M+2}, v{M+3}")
    xrow("v_add_f32", [f"v{M+2}"], ["v4"])
    A(f"v_mov_b32 v{M+3}, v{M+1}")
    A("v_lshlrev_b32 v4, 1, v0")
    A("s_lshl_b32 s12, s8, 10"); A("s_lshl_b32 s66, s7, 2"); A("s_add_u32 s66, s66, s13"); A("s_lshl_b32 s66, s66, 5")
    A("s_add_u32 s12, s12, s66"); A(f"s_add_u32 s12, s12, {WS_ML}")
    A("s_mov_b64 exec, 0x101")
    A(f"buffer_store_dwordx4 v[{M}:{M+3}], v4, s[40:43], s12 offen sc1")
    A("s_mov_b64 exec, -1")
    stamp()
    A.c("---- P.V over my own keys ----")
    assert PR <= 7
    A("s_lshl_b32 s12, s8, 8"); A(f"s_add_u32 s12, s12, {WS_CNT}"); A("s_add_u32 s80, s38, s12"); A("s_addc_u32 s81, s39, 0")
    A(f"s_mov_b32 s67, {f2u(LOG2E/16)}")
    if diag: A("s_mov_b32 s100, 0")
    A("v_lshrrev_b32 v4, 5, v0"); A("v_lshlrev_b32 v8, 2, v4"); A(f"v_add_u32 v8, {L_C}, v8"); A("v_lshlrev_b32 v4, 10, v4")
    A("v_and_b32 v5, 15, v0"); A("v_lshlrev_b32 v6, 5, v5"); A("v_add_u32 v4, v4, v6")
    A("v_bfe_u32 v6, v0, 4, 1"); A("v_lshlrev_b32 v6, 4, v6"); A("v_add_u32 v4, v4, v6")
    A("s_lshl_b32 s12, s13, 11"); A(f"s_add_u32 s12, s12, {L_ACC}"); A("v_add_u32 v4, s12, v4")
    A("v_and_b32 v5, 7, v0"); A("v_lshlrev_b32 v5, 8, v5"); A("v_bfe_u32 v6, v0, 3, 1"); A("v_lshlrev_b32 v6, 7, v6")
    A("v_add_u32 v5, v5, v6"); A("v_lshrrev_b32 v6, 4, v0"); A("v_lshlrev_b32 v6, 5, v6"); A("v_add_u32 v5, v5, v6")
    A("s_lshl_b32 s71, s8, 3"); A("s_add_u32 s71, s71, s7"); A("s_lshl_b32 s71, s71, 11"); A(f"s_add_u32 s71, s71, {WS_M1}")
    A("v_and_b32 v7, 15, v0"); A("v_lshlrev_b32 v7, 11, v7"); A("v_bfe_u32 v6, v0, 4, 1"); A("v_lshlrev_b32 v6, 4, v6"); A("v_add_u32 v7, v7, v6")
    A("s_lshl_b32 s72, s6, 17"); A("s_lshl_b32 s12, s9, 5"); A("s_add_u32 s72, s72, s12"); A(f"s_add_u32 s72, s72, {WS_M2}")
    A(f"s_add_u32 s73, s72, {48*2048}")
    A("s_lshl_b32 s12, s13, 15"); A("s_add_u32 s72, s72, s12")
    A("v_lshlrev_b32 v6, 4, v0")
    def pv_static(u):
        v0_, v1_ = ("v", 2*u), ("v", 2*u+1)
        a = 36 + 4 * (u % 2)
        z = zone(v0_)
        if z is not None:
            nskip[0] += 1
            A(f"s_cmp_gt_u32 s64, {z}"); A(f"s_cbranch_scc1 L_skip{nskip[0]}")
        for r in range(4): A(f"v_and_b32 v{a+r}, v{16+r}, v{SC+u}")
        A(f"v_mfma_f32_16x16x32_bf16 v[20:23], v[{a}:{a+3}], {reg[v0_]}, v[20:23]")
        A(f"v_mfma_f32_16x16x32_bf16 v[24:27], v[{a}:{a+3}], {reg[v1_]}, v[24:27]")
        if z is not None: A(f"L_skip{nskip[0]}:")
    since = 0
    u = PU
    while True:
        v1_ = ("v", 2*u+1)
        if pos[v1_] <= landed():
            since += 1
            if since >= CU: paced_issue(); since = 0
        while pos[v1_] > landed() and paced_issue(): pass
        if pos[v1_] > landed(): break
        pv_static(u); release(("v", 2*u)); release(v1_)
        if u == NU - LAT:
            A(f"v_mov_b32 v9, {L_NONCE}"); A("v_mov_b32 v10, 1"); A("ds_write_b32 v9, v10 offset:12")
        if u == NU - 10: claim()
        u += 1
    assert issued[0] == len(items) and u > NU - LAT
    rest = list(range(u, NU))
    VS = [[free.pop(0) for _ in range(8)] for _ in range(2)]
    WQ = [free.pop(0) for _ in range(NW)]
    for i in range(NW): reg[("w", i)] = WQ[i]
    SR = [244, 248]; PP = 252; SV = ["s74", "s75"]; SS = ["s76", "s77"]
    HI = "v59"
    def wo_load(i):
        tt, bl = i // 3, i % 3
        if bl < 2: A(f"buffer_load_dwordx4 {WQ[i]}, v3, s[52:55], s70 offen offset:{128*bl}{womod}")
        else:
            A(f"buffer_load_dwordx4 {WQ[i]}, v3, s[56:59], s70 offen offset:768{womod}")
            A("s_add_u32 s70, s70, 896")
    def take_ticket(x, dry):
        A("s_waitcnt lgkmcnt(0)")
        A(f"s_sub_u32 s12, s79, {BIAS}")
        A(f"s_cmp_ge_u32 s12, {NT}"); A(f"s_cbranch_scc1 {dry}")
        claim()
        if diag: A("s_add_u32 s100, s100, 1")
        A(f"s_lshl_b32 {SS[x]}, s12, 7"); A(f"s_add_u32 {SS[x]}, {SS[x]}, s78")
        A("s_mul_i32 s66, s12, 2731"); A("s_lshr_b32 s66, s66, 16")
        A("s_mul_i32 s65, s66, 24"); A("s_sub_u32 s12, s12, s65")
        A("s_mul_i32 s65, s12, 43"); A("s_lshr_b32 s65, s65, 7")
        A(f"s_mul_i32 s66, s66, {4*NS}"); A("s_add_u32 s66, s66, s12")
        A("s_mul_i32 s12, s65, 3"); A("s_sub_u32 s66, s66, s12")
        A("s_mul_i32 s12, s65, s61"); A("s_add_u32 s66, s66, s12")
        A("s_min_u32 s12, s65, s62"); A("s_add_u32 s66, s66, s12")
        A("s_min_u32 s12, s65, s60"); A("s_sub_u32 s12, s65, s12"); A(f"s_mul_i32 s12, s12, {DELTA}"); A("s_add_u32 s66, s66, s12")
        A(f"s_lshl_b32 {SV[x]}, s66, 11")
        A("s_waitcnt vmcnt(10)")
        A(f"buffer_load_dwordx4 v[{SR[x]}:{SR[x]+3}], v95, s[40:43], {SS[x]} offen sc1")
    def v_issue(x, i):
        A("s_waitcnt vmcnt(10)")
        A(f"buffer_load_dwordx4 {VS[x][i]}, v2, s[48:51], {SV[x]} offen offset:{(i%2)*256}{vmod}")
        if i % 2 == 1 and i < 7: A(f"s_add_u32 {SV[x]}, {SV[x]}, {2048*NS}")
    def p_compute(x):
        r = SR[x]
        lab[0] += 1; n = lab[0]
        A(f"s_mov_b32 s11, {SPIN}")
        A(f"L_poll{n}:")
        A(f"v_xor_b32 v9, v{M+1}, v{r+1}"); A(f"v_xor_b32 v10, v{M+1}, v{r+3}"); A("v_or_b32 v9, v9, v10")
        A("v_cmp_ne_u32 vcc, 0, v9")
        A(f"s_cbranch_vccz L_done{n}")
        A("s_sub_u32 s11, s11, 1"); A(f"s_cbranch_scc1 L_done{n}")
        A("s_sleep 8")
        A(f"buffer_load_dwordx4 v[{r}:{r+3}], v95, s[40:43], {SS[x]} offen sc1")
        A("s_waitcnt vmcnt(0)")
        A(f"s_branch L_poll{n}")
        A(f"L_done{n}:")
        A(f"v_lshlrev_b32 v{PP}, 16, v{r}"); A(f"v_and_b32 v{PP+1}, 0xffff0000, v{r}")
        A(f"v_lshlrev_b32 v{PP+2}, 16, v{r+2}"); A(f"v_and_b32 v{PP+3}, 0xffff0000, v{r+2}")
        A(f"v_max3_f32 v9, v{PP}, v{PP+1}, v{PP+2}"); A(f"v_max_f32 v9, v9, v{PP+3}")
        A(f"v_cmp_gt_f32 vcc, v9, v{M}")
        nskip[0] += 1; k = nskip[0]
        A(f"s_cbranch_vccz L_skip{k}")
        A.c("a pooled key beats my running maximum: raise it and rescale the accumulators")
        xrow("v_max_f32", ["v9"], ["v10"])
        A(f"v_max_f32 v9, v9, v{M}")
        A(f"v_sub_f32 v10, v{M}, v9"); A("v_mul_f32 v10, s67, v10"); A("v_exp_f32 v10, v10")
        A(f"v_mov_b32 v{M}, v9")
        A("v_readlane_b32 s65, v10, 0"); A("v_readlane_b32 s66, v10, 8")
        A("v_mov_b32 v10, s66"); A("s_mov_b32 exec_hi, 0"); A("v_mov_b32 v10, s65"); A("s_mov_b32 exec_hi, -1")
        A("s_nop 7")
        for q in range(8): A(f"v_mul_f32 v{20+q}, v10, v{20+q}")
        A(f"L_skip{k}:")
        for q in range(4): A(f"v_sub_f32 v{PP+q}, v{PP+q}, v{M}")
        for q in range(4): A(f"v_mul_f32 v{PP+q}, s67, v{PP+q}")
        for q in range(4): A(f"v_exp_f32 v{PP+q}, v{PP+q}")
        for q in range(4): A(f"v_cvt_pk_bf16_f32 v{PP+q}, v{PP+q}, v{PP+q}")
    def pv_pool(x, q):
        a = 36 + 4 * (q % 2)
        for r in range(4): A(f"v_and_b32 v{a+r}, v{16+r}, v{PP+q}")
        A(f"v_mfma_f32_16x16x32_bf16 v[20:23], v[{a}:{a+3}], {VS[x][2*q]}, v[20:23]")
        A(f"v_mfma_f32_16x16x32_bf16 v[24:27], v[{a}:{a+3}], {VS[x][2*q+1]}, v[24:27]")
    nfs = [0]
    def final_factor():
        nfs[0] += 1
        A(f"v_readlane_b32 s65, v{M}, 0"); A(f"v_readlane_b32 s66, v{M}, 8")
        A(f"v_mov_b32 v9, {L_C}")
        lds_wait(f"L_mlw{nfs[0]}", "v9", 16, "v10", 1)
        A("ds_read2_b32 v[12:13], v8 offset0:0 offset1:2")
        A("v_mov_b32 v11, s66"); A("s_mov_b32 exec_hi, 0"); A("v_mov_b32 v11, s65"); A("s_mov_b32 exec_hi, -1")
        A("s_waitcnt lgkmcnt(0)")
        A("v_sub_f32 v11, v11, v12"); A("v_mul_f32 v11, s67, v11"); A("v_exp_f32 v11, v11"); A("v_mul_f32 v11, v11, v13")
    stamp()
    A.c("---- first ticket; its loads go out while my last own units land ----")
    take_ticket(0, "L_noticket")
    base = len(items)
    done = list(rest)
    def static_upto(lim):
        while done and pos[("v", 2*done[0]+1)] <= lim: pv_static(done.pop(0))
    static_upto(base - 11)
    for i in range(8):
        v_issue(0, i)
        static_upto(base + 1 + i - 11)
    left = list(done)
    def body(x, first):
        y = 1 - x
        take_ticket(y, f"L_drain{x}{'f' if first else ''}")
        if first: static_upto(base + 9 - 11)
        for i in range(8):
            v_issue(y, i)
            if i == 0:
                if first: static_upto(base + 10 - 11); assert not done
                else: pv_pool(y, 3)
            if i == 1: p_compute(x)
            if i in (3, 5, 7): pv_pool(x, (i - 3) // 2)
    body(0, True)
    A("L_pool:")
    body(1, False); body(0, False)
    A("s_branch L_pool")
    for x, first in ((0, True), (0, False), (1, False)):
        A(f"L_drain{x}{'f' if first else ''}:")
        done[:] = left
        for t in range(11):
            A("s_waitcnt vmcnt(10)"); wo_load(t)
            if first and t < 2: static_upto(base + 9 + t - 11)
            if t == 1 and not first: pv_pool(1 - x, 3)
            if t == 2: p_compute(x); final_factor()
            if t in (4, 6, 8, 10): pv_pool(x, (t - 4) // 2)
        A("s_branch L_vdone")
    A("L_noticket:")
    done[:] = rest
    final_factor()
    for t in range(11):
        A("s_waitcnt vmcnt(10)"); wo_load(t)
        static_upto(base + t - 11)
    assert not done
    A("L_vdone:")
    A("s_nop 7")
    for q in range(8): A(f"v_mul_f32 v{20+q}, v11, v{20+q}")
    stamp()
    A("ds_write_b128 v4, v[20:23]"); A("ds_write_b128 v4, v[24:27] offset:512")
    A(f"v_mov_b32 v9, {L_C}"); A("v_mov_b32 v10, 1")
    A("s_mov_b64 exec, 1"); A("ds_add_rtn_u32 v10, v9, v10 offset:20"); A("s_mov_b64 exec, -1")
    A("s_waitcnt lgkmcnt(0)")
    A("v_readfirstlane_b32 s12, v10")
    A(f"s_cmp_eq_u32 s12, {NS-1}"); A("s_cbranch_scc1 L_lastwave")
    for t in range(11, NW): wo_load(t)
    A("s_barrier")
    A("s_branch L_wodone")
    A("L_lastwave:")
    A("s_barrier")
    if LWS: A(f"s_sleep {LWS}")
    for t in range(11, NW): wo_load(t)
    A("L_wodone:")
    A.c("---- hand-off 1: gather the 8 splits of my 64 rows (wave 1 polls), project through wo ----")
    A("s_cmp_lg_u32 s13, 0"); A("s_cbranch_scc1 L_nopoll1")
    n = poll_begin()
    A("buffer_load_dwordx4 v[44:47], v5, s[40:43], s71 offen sc1")
    A("buffer_load_dwordx4 v[48:51], v5, s[40:43], s71 offen offset:16 sc1")
    A("s_waitcnt vmcnt(0)")
    A("v_max3_u32 v9, v44, v45, v46"); A("v_max3_u32 v8, v47, v48, v49"); A("v_max3_u32 v9, v9, v50, v51"); A("v_max_u32 v9, v9, v8")
    A("v_cmp_eq_u32 vcc, -1, v9")
    poll_end_masked(n, sl1)
    for perm in ("quad_perm:[1,0,3,2]", "quad_perm:[2,3,0,1]", "row_half_mirror"):
        for t in range(8): A(f"v_add_f32_dpp v{44+t}, v{44+t}, v{44+t} {perm} {DPP}")
    for t in range(8): A(f"v_cvt_pk_bf16_f32 v{44+t}, v{44+t}, v{44+t}")
    A(f"ds_write_b128 v6, v[44:47] offset:{L_PP}"); A(f"ds_write_b128 v6, v[48:51] offset:{L_PP+1024}")
    A("s_waitcnt lgkmcnt(0)")
    A("s_barrier")
    A("s_branch L_gotpp")
    A("L_nopoll1:")
    A("s_barrier")
    A(f"ds_read_b128 v[44:47], v6 offset:{L_PP}"); A(f"ds_read_b128 v[48:51], v6 offset:{L_PP+1024}")
    A("s_waitcnt vmcnt(0) lgkmcnt(0)")
    A("L_gotpp:")
    stamp()
    for t in range(8):
        a = 28 + 4 * (t % 4)
        for r in range(4): A(f"v_and_b32 v{a+r}, v{16+r}, v{44+t}")
        for bl in range(3):
            d = 52 + 4 * bl
            A(f"v_mfma_f32_16x16x32_bf16 v[{d}:{d+3}], v[{a}:{a+3}], {reg[('w', 3*t+bl)]}, " + ("0" if t == 0 else f"v[{d}:{d+3}]"))
    for bl in range(3):
        d = 52 + 4 * bl; x = 64 + 4 * bl
        for r in range(4): A(f"v_permlane32_swap_b32 v{d+r}, v{x+r}")
    for bl in range(3):
        d = 52 + 4 * bl; x = 64 + 4 * bl
        for r in range(4): A(f"v_add_f32_dpp v{d+r}, v{x+r}, v{d+r} row_ror:8 {DPP}")
    for r in range(4): A(f"v_mov_b32_dpp v{52+r}, v{56+r} row_ror:8 row_mask:0xf bank_mask:0xc")
    for r in range(4): A(f"v_min_u32 v{52+r}, -2, v{52+r}")
    for r in range(4): A(f"v_min_u32 v{60+r}, -2, v{60+r}")
    A("s_mov_b32 exec_hi, 0")
    A("buffer_store_dwordx4 v[52:55], v7, s[40:43], s72 offen sc1")
    A("s_cmp_lg_u32 s13, 0"); A("s_cbranch_scc1 L_sdone")
    A("s_mov_b32 exec_lo, 0x00ff00ff")
    A("buffer_store_dwordx4 v[60:63], v7, s[40:43], s73 offen sc1")
    A("L_sdone:")
    stamp()
    dump_stamps(10)
    A("s_endpgm")

    nst[0] = 1
    A.c("================ helper wave ================")
    A("L_helper:")
    A("v_lshlrev_b32 v1, 4, v0")
    A(f"v_mov_b32 v41, {L_NONCE}"); A("v_mov_b32 v42, 0"); A("v_mov_b32 v43, 0"); A("ds_write_b32 v41, v42 offset:4"); A("ds_write_b64 v41, v[42:43] offset:8"); A(f"ds_write_b64 v41, v[42:43] offset:{L_C + 16 - L_NONCE}")
    A("v_mul_u32_u24 v2, 896, v4"); A("v_lshlrev_b32 v6, 6, v5"); A("v_add_u32 v2, v2, v6")
    A("v_mov_b32 v7, 0x40000000"); A("v_cmp_lt_u32 s[80:81], 13, v5"); A("v_cndmask_b32 v2, v2, v7, s[80:81]")
    A("s_waitcnt lgkmcnt(0)")
    A("s_load_dword s10, s[38:39], 0")
    srd(44, 16, 3584)
    X = 16
    A("s_sub_u32 s12, s14, 1"); A("s_cmp_lt_u32 s12, 3"); A("s_cbranch_scc0 L_nox")
    for t in range(4): A(f"buffer_load_dwordx4 v[{X+4*t}:{X+4*t+3}], v2, s[44:47], 0 offen offset:{16*t}")
    A("L_nox:")
    srd(40, 38, WS_SIZE)
    A("s_barrier")
    A("s_sub_u32 s12, s14, 1"); A("s_cmp_lt_u32 s12, 3"); A("s_cbranch_scc0 L_noln")
    A("v_lshlrev_b32 v15, 10, v4"); A("v_add_u32 v15, v15, v6")
    A("s_mov_b32 s13, 3")
    proj_setup("s13")
    A("s_waitcnt vmcnt(0) lgkmcnt(0)")
    A.c("---- LayerNorm (bf16 rounding after every op, as the reference) ----")
    F = 64
    for i in range(16):
        A(f"v_lshlrev_b32 v{F+2*i}, 16, v{X+i}"); A(f"v_and_b32 v{F+2*i+1}, 0xffff0000, v{X+i}")
    A(f"v_pk_add_f32 v[32:33], v[{F}:{F+1}], v[{F+2}:{F+3}]"); A(f"v_pk_add_f32 v[34:35], v[{F+4}:{F+5}], v[{F+6}:{F+7}]")
    for i in range(4, 16, 2):
        A(f"v_pk_add_f32 v[32:33], v[32:33], v[{F+2*i}:{F+2*i+1}]"); A(f"v_pk_add_f32 v[34:35], v[34:35], v[{F+2*i+2}:{F+2*i+3}]")
    A("v_pk_add_f32 v[32:33], v[32:33], v[34:35]"); A("v_add_f32 v32, v32, v33")
    for k in (8, 4, 2, 1): A(f"v_add_f32_dpp v32, v32, v32 row_ror:{k} {DPP}")
    A(f"s_mov_b32 s12, {f2u(1.0/448)}")
    A("v_mul_f32 v32, s12, v32"); A("v_mov_b32 v33, v32")
    A("v_mov_b32 v34, 0"); A("v_mov_b32 v35, 0"); A("v_mov_b32 v36, 0"); A("v_mov_b32 v37, 0")
    for i in range(0, 16, 2):
        A(f"v_pk_add_f32 v[38:39], v[{F+2*i}:{F+2*i+1}], v[32:33] neg_lo:[0,1] neg_hi:[0,1]")
        A(f"v_pk_add_f32 v[40:41], v[{F+2*i+2}:{F+2*i+3}], v[32:33] neg_lo:[0,1] neg_hi:[0,1]")
        A("v_pk_fma_f32 v[34:35], v[38:39], v[38:39], v[34:35]"); A("v_pk_fma_f32 v[36:37], v[40:41], v[40:41], v[36:37]")
    A("v_pk_add_f32 v[34:35], v[34:35], v[36:37]"); A("v_add_f32 v34, v34, v35")
    A("v_cndmask_b32 v34, v34, 0, s[80:81]")
    for k in (8, 4, 2, 1): A(f"v_add_f32_dpp v34, v34, v34 row_ror:{k} {DPP}")
    A("v_mul_f32 v34, s12, v34")
    bf16r("v32", "v32"); A("v_mov_b32 v33, v32")
    bf16r("v34", "v34")
    A(f"v_add_f32 v34, {hex(f2u(1e-5))}, v34"); bf16r("v34", "v34")
    A("v_sqrt_f32 v34, v34"); bf16r("v34", "v34")
    A("v_rcp_f32 v34, v34"); A("v_mov_b32 v35, v34")
    for i in range(16): A(f"v_pk_add_f32 v[{F+2*i}:{F+2*i+1}], v[{F+2*i}:{F+2*i+1}], v[32:33] neg_lo:[0,1] neg_hi:[0,1]")
    for i in range(16): A(f"v_cvt_pk_bf16_f32 v{X+i}, v{F+2*i}, v{F+2*i+1}")
    for i in range(16): A(f"v_lshlrev_b32 v{F+2*i}, 16, v{X+i}"); A(f"v_and_b32 v{F+2*i+1}, 0xffff0000, v{X+i}")
    for i in range(16): A(f"v_pk_mul_f32 v[{F+2*i}:{F+2*i+1}], v[{F+2*i}:{F+2*i+1}], v[34:35]")
    for i in range(16): A(f"v_cvt_pk_bf16_f32 v{X+i}, v{F+2*i}, v{F+2*i+1}")
    for t in range(4): A(f"ds_write_b128 v15, v[{X+4*t}:{X+4*t+3}] offset:{L_XN + 16*t}")
    A("s_add_u32 s12, s10, 1")
    A("v_mov_b32 v42, s12"); A("ds_write_b32 v12, v42")
    A("s_waitcnt lgkmcnt(0)")
    stamp()
    A("s_barrier")
    if diag: A("s_waitcnt lgkmcnt(0)")
    proj_run()
    if diag:
        A("s_branch L_lnd")
    A("L_noln:")
    if diag:
        nst[0] -= 1; stamp(); A("L_lnd:")
    A.c("---- down-projection job: its 64 rows of w2 ----")
    A("s_cmp_lg_u32 s14, 4"); A("s_cbranch_scc1 L_nod0")
    srd(60, 32, 0 if notile else 1792 * 896)
    A(f"s_mul_i32 s12, s15, {64*896}")
    for t in range(56):
        A(f"s_mov_b32 m0, {L_T + t*1024}")
        if t: A("s_add_u32 s12, s12, 1024")
        else: A("s_nop 0")
        A(f"buffer_load_dwordx4 v1, s[60:63], s12 offen{wmod} lds")
    A("L_nod0:")
    A("s_waitcnt lgkmcnt(0)")
    A("s_add_u32 s10, s10, 1")
    stamp()
    for r in range(4): A(f"v_mov_b32 v{8+r}, -1")
    A("s_lshl_b32 s71, s8, 3"); A("s_add_u32 s71, s71, s7"); A("s_lshl_b32 s71, s71, 11"); A(f"s_add_u32 s71, s71, {WS_M1}")
    A("s_lshl_b32 s72, s6, 6"); A("s_add_u32 s72, s72, s9"); A("s_lshl_b32 s72, s72, 11"); A(f"s_add_u32 s72, s72, {WS_M2}")
    for s_ in ("s71", "s72"):
        for o in (0, 1024):
            if not noclear: A(f"buffer_store_dwordx4 v[8:11], v1, s[40:43], {s_} offen offset:{o} sc1")
    A("s_lshl_b32 s80, s8, 8"); A(f"s_add_u32 s80, s80, {WS_CNT}")
    A("v_mov_b32 v45, 0")
    A("s_cmp_lg_u32 s7, 0"); A("s_cbranch_scc1 L_nocnt")
    A(f"v_mov_b32 v46, {BIAS}"); A("v_mov_b32 v47, s10")
    A("s_mov_b64 exec, 1")
    A("buffer_store_dword v46, v45, s[40:43], s80 offen sc1")
    A("s_waitcnt vmcnt(0)")
    A("buffer_store_dword v47, v45, s[40:43], s80 offen offset:128 sc1")
    A("s_mov_b64 exec, -1")
    A("L_nocnt:")
    A(f"v_mov_b32 v41, {L_NONCE}")
    lds_wait("L_hq", "v41", 8, "v40", 4)
    A.c("---- gather q of my two heads ----")
    A(f"s_mul_i32 s12, s6, {PGROW}"); A("s_lshl_b32 s13, s4, 11"); A("s_add_u32 s12, s12, s13"); A(f"s_add_u32 s12, s12, {WS_PG}")
    n = poll_begin()
    A("buffer_load_dwordx4 v[32:35], v1, s[40:43], s12 offen sc1")
    A("buffer_load_dwordx4 v[36:39], v1, s[40:43], s12 offen offset:1024 sc1")
    A("buffer_load_dword v46, v45, s[40:43], s80 offen offset:128 sc1")
    A("s_waitcnt vmcnt(0)")
    A("v_xor_b32 v40, s10, v33"); A("v_xor_b32 v41, s10, v35"); A("v_xor_b32 v42, s10, v37"); A("v_xor_b32 v43, s10, v39"); A("v_xor_b32 v46, s10, v46")
    A("v_or3_b32 v40, v40, v41, v42"); A("v_or3_b32 v40, v40, v43, v46")
    A("v_cmp_ne_u32 vcc, 0, v40")
    poll_end_masked(n, slq)
    A("v_lshlrev_b32 v40, 3, v0"); A(f"v_add_u32 v40, {L_Q}, v40")
    A("ds_write2_b32 v40, v32, v34 offset0:0 offset1:1")
    A("ds_write2_b32 v40, v36, v38 offset0:128 offset1:129")
    A(f"v_mov_b32 v41, {L_NONCE}"); A("v_mov_b32 v42, s10"); A("ds_write_b32 v41, v42")
    A("s_waitcnt lgkmcnt(0)")
    A("v_mov_b32 v44, 1"); A("ds_write_b32 v41, v44 offset:4")
    A("s_lshl_b32 s12, s6, 6"); A("s_add_u32 s12, s12, s9"); A("s_lshl_b32 s12, s12, 2"); A(f"s_add_u32 s12, s12, {WS_RDY}")
    A("v_mov_b32 v43, 0")
    A("s_mov_b64 exec, 1")
    A("buffer_store_dword v42, v43, s[40:43], s12 offen sc1")
    A("s_mov_b64 exec, -1")
    stamp()
    A.c("---- down projection: h = silu(gate) * up for 64 columns, times 64 rows of w2 ----")
    A("s_cmp_lg_u32 s14, 4"); A("s_cbranch_scc1 L_nod1")
    rowmasks()
    A(f"v_mul_u32_u24 v40, {PGROW}, v4"); A("v_lshlrev_b32 v41, 4, v5"); A("v_add_u32 v40, v40, v41")
    A("s_lshl_b32 s12, s15, 8"); A(f"s_add_u32 s12, s12, {WS_PG + 2048*8}"); A(f"s_add_u32 s13, s12, {896*8}")
    n = poll_begin()
    A("buffer_load_dwordx4 v[16:19], v40, s[40:43], s12 offen sc1")
    A("buffer_load_dwordx4 v[20:23], v40, s[40:43], s13 offen sc1")
    A("s_waitcnt vmcnt(0)")
    for i in range(4): A(f"v_xor_b32 v{24+i}, s10, v{17+2*i}")
    A("v_or3_b32 v24, v24, v25, v26"); A("v_or_b32 v24, v24, v27")
    A("v_cmp_ne_u32 vcc, 0, v24")
    poll_end_masked(n, slm)
    A(f"s_mov_b32 s13, {f2u(-LOG2E)}")
    for i in range(2):
        A(f"v_lshlrev_b32 v{24+2*i}, 16, v{16+2*i}"); A(f"v_and_b32 v{25+2*i}, 0xffff0000, v{16+2*i}")
        A(f"v_lshlrev_b32 v{28+2*i}, 16, v{20+2*i}"); A(f"v_and_b32 v{29+2*i}, 0xffff0000, v{20+2*i}")
    for i in range(4): A(f"v_mul_f32 v{32+i}, s13, v{24+i}")
    for i in range(4): A(f"v_exp_f32 v{32+i}, v{32+i}")
    for i in range(4): A(f"v_add_f32 v{32+i}, 1.0, v{32+i}")
    for i in range(4): A(f"v_rcp_f32 v{32+i}, v{32+i}")
    for i in range(4): A(f"v_mul_f32 v{32+i}, v{24+i}, v{32+i}")
    for i in range(4): bf16r(f"v{32+i}", f"v{32+i}")
    for i in range(4): A(f"v_mul_f32 v{32+i}, v{32+i}, v{28+i}")
    A("v_cvt_pk_bf16_f32 v32, v32, v33"); A("v_cvt_pk_bf16_f32 v33, v34, v35")
    A("v_lshlrev_b32 v34, 3, v0")
    A(f"ds_write_b64 v34, v[32:33] offset:{L_H}")
    A("v_and_b32 v48, 3, v0"); A("v_lshlrev_b32 v35, 7, v48"); A("v_lshlrev_b32 v36, 4, v4"); A("v_add_u32 v35, v35, v36")
    A("v_bfe_u32 v50, v0, 2, 2"); A("v_lshlrev_b32 v51, 3, v4"); A("v_add_u32 v50, v50, v51")
    A("v_mul_u32_u24 v50, 896, v50"); A("v_lshlrev_b32 v51, 3, v48"); A("v_add_u32 v50, v50, v51")
    A(f"v_add_u32 v51, {32*896}, v50")
    A(f"v_mul_u32_u24 v44, {56*1792}, v4"); A("v_bfe_u32 v45, v0, 3, 1"); A("v_mul_u32_u24 v45, 1792, v45"); A("v_add_u32 v44, v44, v45")
    A("v_and_b32 v45, 7, v0"); A("v_lshlrev_b32 v45, 3, v45"); A("v_add_u32 v44, v44, v45")
    A("s_lshl_b32 s12, s15, 6"); A(f"s_add_u32 s12, s12, {WS_FG}")
    A("s_waitcnt lgkmcnt(0)")
    A(f"ds_read_b128 v[56:59], v35 offset:{L_H}"); A(f"ds_read_b128 v[60:63], v35 offset:{L_H+64}")
    B2 = 64
    for g0 in range(0, 28, 3):
        cts = list(range(g0, min(28, g0 + 3)))
        A("s_waitcnt lgkmcnt(0)")
        for z, ct in enumerate(cts):
            r = B2 + 8 * z
            A(f"ds_read_b64_tr_b16 v[{r}:{r+1}], v50 offset:{L_T + 32*ct}")
            A(f"ds_read_b64_tr_b16 v[{r+2}:{r+3}], v50 offset:{L_T + 32*ct + 3584}")
            A(f"ds_read_b64_tr_b16 v[{r+4}:{r+5}], v51 offset:{L_T + 32*ct}")
            A(f"ds_read_b64_tr_b16 v[{r+6}:{r+7}], v51 offset:{L_T + 32*ct + 3584}")
        A("s_waitcnt lgkmcnt(0)")
        for z, ct in enumerate(cts):
            r = B2 + 8 * z; d = 96 + 4 * z
            A(f"v_mfma_f32_16x16x32_bf16 v[{d}:{d+3}], v[56:59], v[{r}:{r+3}], 0")
            A(f"v_mfma_f32_16x16x32_bf16 v[{d}:{d+3}], v[60:63], v[{r+4}:{r+7}], v[{d}:{d+3}]")
        for z, ct in enumerate(cts):
            d = 96 + 4 * z; o = 112 + 2 * z
            pick_row(f"v{o}", d); A(f"v_mov_b32 v{o+1}, s10")
            A(f"buffer_store_dwordx2 v[{o}:{o+1}], v44, s[40:43], s12 offen sc1")
            A("s_add_u32 s12, s12, 3584")
    A("L_nod1:")
    stamp()
    A.c("---- late gathers, all in one round trip: ready tags of my batch row, down-projection partials, softmax statistics ----")
    srd(64, 34, 3584)
    A("v_and_b32 v34, 1, v0")
    A("v_lshlrev_b32 v60, 3, v34")
    A("s_mul_i32 s70, s6, 896"); A("s_lshl_b32 s13, s9, 4"); A("s_add_u32 s70, s70, s13")
    A("v_lshlrev_b32 v32, 2, v0")
    A("s_lshl_b32 s60, s6, 8"); A(f"s_add_u32 s60, s60, {WS_RDY}")
    A("v_lshlrev_b32 v35, 5, v0")
    A("s_min_u32 s13, s9, 55")
    A("s_mul_i32 s61, s6, 56"); A("s_add_u32 s61, s61, s13"); A("s_mul_i32 s61, s61, 1792"); A(f"s_add_u32 s61, s61, {WS_FG}")
    A("s_lshl_b32 s62, s8, 10"); A(f"s_add_u32 s62, s62, {WS_ML}")
    for i in range(8): A(f"v_mov_b32 v{16+i}, 0")
    A("v_mov_b32 v44, 0xff800000"); A("v_mov_b32 v46, 0")
    A(f"v_mov_b32 v41, {L_NONCE}")
    lds_wait("L_hl", "v41", 12, "v40", 4)
    stamp()
    A("buffer_load_dwordx2 v[62:63], v60, s[44:47], s70 offen")
    A("buffer_load_dword v33, v32, s[40:43], s60 offen sc1")
    A("s_mov_b32 exec_hi, 0x00ffffff")
    A("buffer_load_dwordx4 v[16:19], v35, s[40:43], s61 offen sc1")
    A("buffer_load_dwordx4 v[20:23], v35, s[40:43], s61 offen offset:16 sc1")
    A("s_mov_b32 exec_lo, 0x3f3f3f3f"); A("s_mov_b32 exec_hi, 0x3f3f3f3f")
    A("buffer_load_dwordx4 v[44:47], v1, s[40:43], s62 offen sc1")
    A("s_mov_b64 exec, -1")
    A("s_waitcnt vmcnt(0)")
    lab[0] += 1; n = lab[0]
    A(f"s_mov_b32 s11, {SPIN}"); A(f"s_branch L_chk{n}")
    A(f"L_poll{n}:")
    A("buffer_load_dword v33, v32, s[40:43], s60 offen sc1")
    A("s_waitcnt vmcnt(0)")
    A(f"L_chk{n}:")
    A("v_cmp_ne_u32 vcc, s10, v33")
    poll_end_masked(n, slm)
    A("s_mov_b32 exec_hi, 0x00ffffff")
    lab[0] += 1; n = lab[0]
    A(f"s_mov_b32 s11, {SPIN}"); A(f"s_branch L_chk{n}")
    A(f"L_poll{n}:")
    A("buffer_load_dwordx4 v[16:19], v35, s[40:43], s61 offen sc1")
    A("buffer_load_dwordx4 v[20:23], v35, s[40:43], s61 offen offset:16 sc1")
    A("s_waitcnt vmcnt(0)")
    A(f"L_chk{n}:")
    for i in range(4): A(f"v_xor_b32 v{24+i}, s10, v{17+2*i}")
    A("v_or3_b32 v24, v24, v25, v26"); A("v_or_b32 v24, v24, v27")
    A("v_cmp_ne_u32 vcc, 0, v24")
    poll_end_masked(n, slm)
    A.c("---- gate value g for my 8 output columns ----")
    for perm in ("quad_perm:[2,3,0,1]", "row_ror:4", "row_ror:8"):
        for i in range(4): A(f"v_add_f32_dpp v{16+2*i}, v{16+2*i}, v{16+2*i} {perm} {DPP}")
    xrow("v_add_f32", [f"v{16+2*i}" for i in range(4)], [f"v{17+2*i}" for i in range(4)])
    A(f"s_mov_b32 s13, {f2u(-LOG2E)}")
    G = 56
    for i in range(4): bf16r(f"v{16+2*i}", f"v{16+2*i}")
    for i in range(4): A(f"v_mul_f32 v{G+i}, s13, v{16+2*i}")
    for i in range(4): A(f"v_exp_f32 v{G+i}, v{G+i}")
    for i in range(4): A(f"v_add_f32 v{G+i}, 1.0, v{G+i}")
    for i in range(4): A(f"v_rcp_f32 v{G+i}, v{G+i}")
    for i in range(4): A(f"v_mul_f32 v{G+i}, v{16+2*i}, v{G+i}")
    for i in range(4): bf16r(f"v{G+i}", f"v{G+i}")
    A("v_lshlrev_b32 v52, 16, v62"); A("v_and_b32 v53, 0xffff0000, v62"); A("v_lshlrev_b32 v54, 16, v63"); A("v_and_b32 v55, 0xffff0000, v63")
    stamp()
    A.c("---- softmax statistics of the whole row: per-wave factors exp(m_w - M) / L ----")
    A("s_mov_b32 exec_lo, 0x3f3f3f3f"); A("s_mov_b32 exec_hi, 0x3f3f3f3f")
    lab[0] += 1; n = lab[0]
    A(f"s_mov_b32 s11, {SPIN}"); A(f"s_branch L_chk{n}")
    A(f"L_poll{n}:")
    A("buffer_load_dwordx4 v[44:47], v1, s[40:43], s62 offen sc1")
    A("s_waitcnt vmcnt(0)")
    A(f"L_chk{n}:")
    A("v_xor_b32 v20, s10, v45"); A("v_xor_b32 v21, s10, v47"); A("v_or_b32 v20, v20, v21")
    A("v_cmp_ne_u32 vcc, 0, v20")
    poll_end_masked(n, slm)
    A("v_mov_b32 v20, v44")
    for perm in ("quad_perm:[2,3,0,1]", "row_ror:4", "row_ror:8"): A(f"v_max_f32_dpp v20, v20, v20 {perm} {DPP}")
    xrow("v_max_f32", ["v20"], ["v21"])
    A(f"s_mov_b32 s13, {f2u(LOG2E/16)}")
    A("v_sub_f32 v21, v44, v20"); A("v_mul_f32 v21, s13, v21"); A("v_exp_f32 v21, v21")
    A("v_mul_f32 v21, v21, v46")
    for perm in ("quad_perm:[2,3,0,1]", "row_ror:4", "row_ror:8"): A(f"v_add_f32_dpp v21, v21, v21 {perm} {DPP}")
    xrow("v_add_f32", ["v21"], ["v22"])
    A("v_rcp_f32 v21, v21")
    A("v_and_b32 v22, 1, v0"); A("v_lshlrev_b32 v22, 2, v22"); A(f"v_add_u32 v22, {L_C}, v22")
    A("ds_write2_b32 v22, v20, v21 offset0:0 offset1:2")
    A("s_waitcnt lgkmcnt(0)")
    A(f"v_mov_b32 v22, {L_C}"); A("v_mov_b32 v23, 1"); A("ds_write_b32 v22, v23 offset:16")
    A("v_lshrrev_b32 v22, 3, v0"); A("v_lshlrev_b32 v22, 11, v22"); A("v_and_b32 v23, 7, v0"); A("v_lshlrev_b32 v23, 4, v23"); A("v_add_u32 v22, v22, v23")
    A(f"v_add_u32 v23, {L_ACC}, v1")
    A("s_lshl_b32 s12, s8, 14"); A("s_lshl_b32 s13, s7, 8"); A("s_add_u32 s12, s12, s13"); A(f"s_add_u32 s12, s12, {WS_M1}")
    stamp()
    A("s_waitcnt lgkmcnt(0)")
    A("s_barrier")
    A.c("---- combine the three waves, publish the normalised partial ----")
    for h in range(2):
        for w in range(NS):
            r = 64 + 16 * h + 4 * w
            A(f"ds_read_b128 v[{r}:{r+3}], v23 offset:{w*2048 + h*1024}")
    for h in range(2):
        r0 = 64 + 16 * h
        A(f"s_waitcnt lgkmcnt({NS if h == 0 else 0})")
        for w in range(NS):
            for e in range(4):
                if w > 0: A(f"v_add_f32 v{r0+e}, v{r0+e}, v{r0+4*w+e}")
        for e in range(4): A(f"v_min_u32 v{r0+e}, -2, v{r0+e}")
        A(f"buffer_store_dwordx4 v[{r0}:{r0+3}], v22, s[40:43], s12 offen offset:{128*h} sc1")
    stamp()
    A("s_barrier")
    A("s_cmp_ge_u32 s9, 56"); A("s_cbranch_scc1 L_fin")
    A.c("---- hand-off 2: sum the 64 projected partials of my 8 columns, gate, residual ----")
    n = poll_begin()
    A("buffer_load_dwordx4 v[16:19], v1, s[40:43], s72 offen sc1")
    A("buffer_load_dwordx4 v[20:23], v1, s[40:43], s72 offen offset:1024 sc1")
    A("s_waitcnt vmcnt(0)")
    A("v_max3_u32 v24, v16, v17, v18"); A("v_max3_u32 v25, v19, v20, v21"); A("v_max3_u32 v24, v24, v22, v23"); A("v_max_u32 v24, v24, v25")
    A("v_cmp_eq_u32 vcc, -1, v24")
    poll_end_masked(n, sl2)
    for e in range(4): A(f"v_add_f32 v{16+e}, v{16+e}, v{20+e}")
    for perm in ("quad_perm:[2,3,0,1]", "row_ror:4", "row_ror:8"):
        for e in range(4): A(f"v_add_f32_dpp v{16+e}, v{16+e}, v{16+e} {perm} {DPP}")
    xrow("v_add_f32", [f"v{16+e}" for e in range(4)], [f"v{20+e}" for e in range(4)])
    for e in range(4): bf16r(f"v{16+e}", f"v{16+e}")
    for e in range(4): A(f"v_mul_f32 v{16+e}, v{16+e}, v{G+e}")
    for e in range(4): bf16r(f"v{16+e}", f"v{16+e}")
    for e in range(4): A(f"v_add_f32 v{16+e}, v{52+e}, v{16+e}")
    A("v_cvt_pk_bf16_f32 v16, v16, v17"); A("v_cvt_pk_bf16_f32 v17, v18, v19")
    A("s_mov_b64 exec, 3")
    A("buffer_store_dwordx2 v[16:17], v60, s[64:67], s70 offen")
    A("s_cmp_lg_u32 s2, 0"); A("s_cbranch_scc1 L_fin")
    A("s_mov_b64 exec, 1")
    A("v_mov_b32 v18, 0"); A("v_mov_b32 v19, s10")
    A("buffer_store_dword v19, v18, s[40:43], 0 offen sc1")
    A("L_fin:")
    stamp()
    dump_stamps(nst[0])
    A("L_end:"); A("s_endpgm")
    A('.section .rodata,"a"'); A(".p2align 6"); A(f".amdhsa_kernel {KNAME}")
    A("  .amdhsa_next_free_vgpr 512"); A("  .amdhsa_next_free_sgpr 102"); A("  .amdhsa_accum_offset 256")
    A("  .amdhsa_group_segment_fixed_size 0"); A("  .amdhsa_kernarg_size 96"); A("  .amdhsa_user_sgpr_count 2")
    A("  .amdhsa_user_sgpr_kernarg_segment_ptr 1"); A("  .amdhsa_system_sgpr_workgroup_id_x 1"); A(".end_amdhsa_kernel")
    text, npad = A.text()
    return HEADER + text

if __name__ == "__main__":
    import json
    kw = json.loads(sys.argv[2]) if len(sys.argv) > 2 else {}
    open(sys.argv[1], "w").write(gen(**kw))
```
